```python
import torch

def _softmax(x, axis=-1):
    return torch.softmax(x, dim=axis)
def _gelu(x):
    return torch.nn.functional.gelu(x, approximate="tanh")
def _silu(x):
    return torch.nn.functional.silu(x)
def _sigmoid(x):
    return torch.sigmoid(x)
def _layernorm(x, axis=-1, eps=1e-5):
    m = x.mean(dim=axis, keepdim=True)
    v = x.var(dim=axis, keepdim=True, unbiased=False)
    return (x - m) / torch.sqrt(v + eps)
def _scatter_add(tgt, idx, src, axis=0):
    return tgt.clone().index_add_(axis, idx, src)
def _segment_sum(src, seg, n):
    out = torch.zeros((n,) + src.shape[1:], dtype=src.dtype)
    return out.index_add_(0, seg, src)
def _pad(x, pw):
    flat = tuple(v for pair in reversed(pw) for v in pair)
    return torch.nn.functional.pad(x, flat)

kernel_name = 'gated_mix__mha_block__dense_activation_squared_relu__prompt'

def setup_inputs():

    _w = (lambda a: (lambda t: t.to(torch.bfloat16) if t.is_floating_point() else t)(torch.as_tensor(a)))
    def _A_setup():
        B, S, D, H = 1, 2048, 640, 32
        return {
            "x": _w((lambda *s: torch.randn(*s, dtype=torch.bfloat16) * 0.05)(B, S, D)),
            "wqkv": _w((lambda *s: torch.randn(*s, dtype=torch.bfloat16) * 0.8)(D, 3 * D)),
            "wo": _w((lambda *s: torch.randn(*s, dtype=torch.bfloat16) * 0.1)(D, D)),
        }
    _A_in = _A_setup()

    def _B_setup():
        B, S, D, F = 1, 2048, 640, 1536
        return {
            "x": _w((lambda *s: torch.randn(*s, dtype=torch.bfloat16) * 0.05)(B, S, D)),
            "w1": _w((lambda *s: torch.randn(*s, dtype=torch.bfloat16) * 0.1)(D, F)),
            "b1": _w((lambda *s: torch.randn(*s, dtype=torch.bfloat16) * 0.1)(F)),
            "w2": _w((lambda *s: torch.randn(*s, dtype=torch.bfloat16) * 0.1)(F, D)),
            "b2": _w((lambda *s: torch.randn(*s, dtype=torch.bfloat16) * 0.05)(D)),
        }
    _B_in = _B_setup()

    return {
        "A_x": _A_in["x"],
        "A_wqkv": _A_in["wqkv"],
        "A_wo": _A_in["wo"],
        "B_x": _B_in["x"],
        "B_w1": _B_in["w1"],
        "B_b1": _B_in["b1"],
        "B_w2": _B_in["w2"],
        "B_b2": _B_in["b2"],
        "gate_w": _w((lambda *s: torch.randn(*s, dtype=torch.bfloat16) * 0.05)(640) * 16.0),
    }

def reference(A_x, A_wqkv, A_wo, B_x, B_w1, B_b1, B_w2, B_b2, gate_w):
    def _A_ref(x, wqkv, wo):
        B, S, D = x.shape
        H = 32
        Dh = D // H
        qkv = (lambda x, *d: x.permute(*d))((x @ wqkv).reshape(B, S, 3, H, Dh), 2, 0, 3, 1, 4)
        q, k, v = qkv[0], qkv[1], qkv[2]
        scores = torch.einsum("bhqd,bhkd->bhqk", q, k) * (Dh ** -0.5)
        p = _softmax(scores, axis=-1)
        o = torch.einsum("bhqk,bhkd->bhqd", p, v)
        return (lambda x, *d: x.permute(*d))(o, 0, 2, 1, 3).reshape(B, S, D) @ wo

    def _B_ref(x, w1, b1, w2, b2):
        h = torch.einsum("bsd,df->bsf", x, w1) + b1
        zero = torch.zeros_like(h)
        r = torch.where(h > zero, h, zero)
        h = r * r
        out = torch.einsum("bsf,fd->bsd", h, w2) + b2
        return out

    x = A_x
    g = _sigmoid((x * gate_w).sum(-1, keepdims=True))
    a = _A_ref(x, A_wqkv, A_wo)
    b = _B_ref(x, B_w1, B_b1, B_w2, B_b2)
    return g * a + (1 - g) * b
```

```python
class Asm:
    def __init__(self):
        self.L = []
    def __call__(self, s=""):
        for l in s.split("\n"):
            self.L.append("    " + l.strip() if l.strip() and not l.strip().endswith(":") else l.strip())
    def label(self, name):
        self.L.append(name + ":")
    def c(self, s):
        self.L.append("    ; " + s)
    def text(self):
        return "\n".join(self.L) + "\n"

def v(b, n=1):
    return f"v{b}" if n == 1 else f"v[{b}:{b+n-1}]"
def a(b, n=1):
    return f"a{b}" if n == 1 else f"a[{b}:{b+n-1}]"
def s(b, n=1):
    return f"s{b}" if n == 1 else f"s[{b}:{b+n-1}]"

def kernel_header(name):
    return f".globl {name}\n.p2align 8\n.type {name},@function\n{name}:\n"

def kernel_desc(name, nvgpr, nsgpr=96, accum=None):
    if accum is None:
        accum = (nvgpr + 3) // 4 * 4
    return f""".p2align 6
.amdhsa_kernel {name}
  .amdhsa_next_free_vgpr {nvgpr}
  .amdhsa_next_free_sgpr {nsgpr}
  .amdhsa_accum_offset {accum}
  .amdhsa_group_segment_fixed_size 0
  .amdhsa_kernarg_size 96
  .amdhsa_user_sgpr_count 2
  .amdhsa_user_sgpr_kernarg_segment_ptr 1
  .amdhsa_system_sgpr_workgroup_id_x 1
.end_amdhsa_kernel
"""
```

```python
from asmlib import *
from layout import *

vLANE16 = 2
vKA = 3
vK8A = 4
vVA = 5
vK8B = 6
vVB = 7
Q16, Q8 = 8, 12
K8, K16 = 14, 16
V0, V1 = 20, 24
P = 28
O = 36
SB = [52, 68]
vT = 84
SLOT = 20480
NSLOT = 3

sWS = 4
sSRD = 8
sWAVE, sHEAD, sQT = 12, 13, 14
sGOFF, sLOFF, sCH = 15, 16, 17
sKSLOT, sVSLOT = 18, 19
sMV = 20
sML = 22
sT = 24

def mfma16(d, aa, bb, cc):
    return f"v_mfma_f32_32x32x16_bf16 {v(d,16)}, {v(aa,4)}, {v(bb,4)}, {cc}"
def mfma8(d, aa, bb, cc):
    return f"v_mfma_f32_32x32x8_bf16 {v(d,16)}, {v(aa,2)}, {v(bb,2)}, {cc}"

def dma_chunk(A):
    A(f"s_mov_b32 m0, {s(sLOFF)}")
    A(f"s_add_u32 {s(sLOFF)}, {s(sLOFF)}, {SLOT}")
    A(f"buffer_load_dwordx4 {v(vLANE16)}, {s(sSRD,4)}, {s(sGOFF)} offen lds")
    A(f"buffer_load_dwordx4 {v(vLANE16)}, {s(sSRD,4)}, {s(sGOFF)} offen offset:1024 lds")
    A(f"s_mov_b64 exec, {s(sML,2)}")
    A(f"buffer_load_dwordx4 {v(vLANE16)}, {s(sSRD,4)}, {s(sGOFF)} offen offset:2048 lds")
    A(f"s_mov_b64 exec, -1")
    A(f"s_add_u32 {s(sGOFF)}, {s(sGOFF)}, 10240")
    A(f"s_cmp_ge_u32 {s(sLOFF)}, {NSLOT*SLOT}")
    A(f"s_cselect_b32 {s(sT)}, {NSLOT*SLOT}, 0")
    A(f"s_sub_u32 {s(sLOFF)}, {s(sLOFF)}, {s(sT)}")

def next_slot(A, sreg):
    A(f"s_add_u32 {s(sreg)}, {s(sreg)}, {SLOT}")
    A(f"s_cmp_ge_u32 {s(sreg)}, {NSLOT*SLOT}")
    A(f"s_cselect_b32 {s(sreg)}, 0, {s(sreg)}")

ABL = set()
def read_K(A, tl):
    if 'nokread' in ABL: return
    A(f"ds_read_b128 {v(K16,4)}, {v(vKA)} offset:{tl*1280}")
    A(f"ds_read_b64 {v(K8,2)}, {v(vK8A)} offset:{tl*1280}")
def read_V(A, tl):
    if 'novread' in ABL: return
    if 'noexec' not in ABL: A(f"s_mov_b64 exec, {s(sMV,2)}")
    A(f"ds_read_b128 {v(V0,4)}, {v(vVA)} offset:{tl*1280}")
    A(f"ds_read_b128 {v(V1,4)}, {v(vVA)} offset:{tl*1280+640}")
    if 'noexec' not in ABL: A(f"s_mov_b64 exec, -1")

def E(A, sb, i): A(f"v_exp_f32 {v(sb+i)}, {v(sb+i)}")
def C(A, sb, i): A(f"v_cvt_pk_bf16_f32 {v(P+i)}, {v(sb+2*i)}, {v(sb+2*i+1)}")

def tile_body(A, tl, pfx):
    cur, nxt = SB[tl & 1], SB[(tl + 1) & 1]
    for i in range(4): E(A, cur, i)
    A("s_waitcnt lgkmcnt(2)")
    A(mfma16(nxt, K16, Q16, "0"))
    for i in range(4, 8): E(A, cur, i)
    C(A, cur, 0)
    A(mfma8(nxt, K8, Q8, v(nxt,16)))
    if tl == 6:
        if 'nobar' not in ABL:
            A("s_waitcnt vmcnt(0)")
            A("s_barrier")
        A(f"s_cmp_ge_u32 {s(sCH)}, 6")
        A(f"s_cbranch_scc1 {pfx}_nodma")
        dma_chunk(A)
        A.label(f"{pfx}_nodma")
        next_slot(A, sKSLOT)
        A(f"v_add_u32 {v(vKA)}, {s(sKSLOT)}, {v(vLANE16)}")
        A(f"v_add_u32 {v(vK8A)}, {s(sKSLOT)}, {v(vK8B)}")
    read_K(A, (tl + 2) & 7)
    C(A, cur, 1); C(A, cur, 2); C(A, cur, 3)
    E(A, cur, 8); E(A, cur, 9); E(A, cur, 10)
    A("s_waitcnt lgkmcnt(3)")
    A(f"v_mfma_f32_32x32x16_bf16 {v(O,16)}, {v(V0,4)}, {v(P,4)}, {v(O,16)}")
    E(A, cur, 11); E(A, cur, 12); E(A, cur, 13)
    C(A, cur, 4); C(A, cur, 5)
    E(A, cur, 14); E(A, cur, 15)
    C(A, cur, 6); C(A, cur, 7)
    A("s_waitcnt lgkmcnt(2)")
    A("s_nop 0")
    A(f"v_mfma_f32_32x32x16_bf16 {v(O,16)}, {v(V1,4)}, {v(P+4,4)}, {v(O,16)}")
    if tl == 7:
        next_slot(A, sVSLOT)
        A(f"v_add_u32 {v(vVA)}, {s(sVSLOT)}, {v(vVB)}")
    read_V(A, (tl + 1) & 7)

STAMP = 0x2000000
def stamp_start(A):
    A("s_memtime s[40:41]")
    A("s_memrealtime s[42:43]")
def stamp_mid(A, r):
    A(f"s_memtime s[{r}:{r+1}]")
def stamp_end(A, wave_sreg):
    A("s_mov_b64 exec, -1")
    A("s_memtime s[44:45]")
    A("s_memrealtime s[46:47]")
    A("s_waitcnt lgkmcnt(0)")
    A("s_sub_u32 s44, s44, s40")
    A("s_sub_u32 s48, s48, s40")
    A("s_sub_u32 s50, s50, s40")
    A("s_lshl_b32 s52, s2, 4")
    A(f"s_add_u32 s52, s52, s{wave_sreg}")
    A("s_lshl_b32 s52, s52, 5")
    A(f"s_add_u32 s52, s52, {STAMP}")
    A("v_mov_b32 v100, s44"); A("v_mov_b32 v101, s42"); A("v_mov_b32 v102, s46"); A("v_mov_b32 v103, s48")
    A("v_mov_b32 v104, s50"); A("v_mov_b32 v105, 0")
    A("v_mov_b32 v106, 0")
    A(f"buffer_store_dwordx4 v[100:103], v106, {s(sSRD,4)}, s52 offen")
    A(f"buffer_store_dwordx2 v[104:105], v106, {s(sSRD,4)}, s52 offen offset:16")

def gen_attn(A, pfx="at", stamp=False):
    A.c("---- attention: wg -> (head, qblock)")
    if stamp: stamp_start(A)
    A(f"s_load_dwordx2 {s(sWS,2)}, s[0:1], {KARG['ws']}")
    A("v_lshrrev_b32 v1, 6, v0")
    A(f"v_and_b32 v0, 63, v0")
    A(f"v_readfirstlane_b32 {s(sWAVE)}, v1")
    A(f"s_and_b32 {s(sT)}, s2, 7")
    A(f"s_lshr_b32 {s(sT+1)}, s2, 3")
    A(f"s_lshr_b32 {s(sT+2)}, {s(sT+1)}, 3")
    A(f"s_lshl_b32 {s(sHEAD)}, {s(sT)}, 2")
    A(f"s_add_u32 {s(sHEAD)}, {s(sHEAD)}, {s(sT+2)}")
    A(f"s_and_b32 {s(sT+1)}, {s(sT+1)}, 7")
    A(f"s_lshl_b32 {s(sQT)}, {s(sT+1)}, 3")
    A(f"s_add_u32 {s(sQT)}, {s(sQT)}, {s(sWAVE)}")
    A(f"v_lshlrev_b32 {v(vLANE16)}, 4, v0")
    A(f"v_and_b32 {v(vT)}, 31, v0")
    A(f"v_lshrrev_b32 {v(vT+1)}, 5, v0")
    A(f"v_lshlrev_b32 {v(vK8B)}, 3, {v(vT)}")
    A(f"v_mul_u32_u24 {v(vVB)}, 320, {v(vT+1)}")
    A(f"v_lshl_add_u32 {v(vVB)}, {v(vT)}, 4, {v(vVB)}")
    A(f"v_add_u32 {v(vVB)}, 10240, {v(vVB)}")
    A(f"s_mov_b32 {s(sMV)}, 0x000FFFFF")
    A(f"s_mov_b32 {s(sMV+1)}, 0x000FFFFF")
    A(f"s_mov_b32 {s(sML)}, -1")
    A(f"s_mov_b32 {s(sML+1)}, 0")
    A(f"s_mul_i32 {s(sT+3)}, {s(sHEAD)}, {HEADB}")
    A("s_waitcnt lgkmcnt(0)")
    A(f"s_mov_b32 {s(sSRD)}, {s(sWS)}")
    A(f"s_and_b32 {s(sSRD+1)}, {s(sWS+1)}, 0xffff")
    A(f"s_mov_b32 {s(sSRD+2)}, {WS_USED}")
    A(f"s_mov_b32 {s(sSRD+3)}, 0x20000")
    A(f"s_and_b32 {s(sT)}, {s(sWAVE)}, 3")
    A(f"s_mul_i32 {s(sT)}, {s(sT)}, 2560")
    A(f"s_cmp_ge_u32 {s(sWAVE)}, 4")
    A(f"s_cselect_b32 {s(sT+1)}, {VF-KF}, 0")
    A(f"s_add_u32 {s(sT+1)}, {s(sT+1)}, {KF}")
    A(f"s_add_u32 {s(sGOFF)}, {s(sT)}, {s(sT+1)}")
    A(f"s_add_u32 {s(sGOFF)}, {s(sGOFF)}, {s(sT+3)}")
    A(f"s_mul_i32 {s(sLOFF)}, {s(sWAVE)}, 2560")
    A(f"s_mul_i32 {s(sT)}, {s(sQT)}, 1280")
    A(f"s_add_u32 {s(sT)}, {s(sT)}, {s(sT+3)}")
    if QF: A(f"s_add_u32 {s(sT)}, {s(sT)}, {QF}")
    A(f"v_mov_b32 {v(Q8)}, 0")
    A(f"v_mov_b32 {v(Q8+1)}, 0")
    A(f"buffer_load_dwordx4 {v(Q16,4)}, {v(vLANE16)}, {s(sSRD,4)}, {s(sT)} offen")
    A(f"s_mov_b64 exec, {s(sML,2)}")
    A(f"buffer_load_dwordx2 {v(Q8,2)}, {v(vK8B)}, {s(sSRD,4)}, {s(sT)} offen offset:1024")
    A(f"s_mov_b64 exec, -1")
    dma_chunk(A)
    dma_chunk(A)
    A(f"v_add_u32 {v(vK8B)}, 1024, {v(vK8B)}")
    for i in range(16): A(f"v_mov_b32 {v(O+i)}, 0")
    A(f"v_cmp_eq_u32 vcc, 20, {v(vT)}")
    A(f"v_mov_b32 {v(vT+2)}, 0x3f803f80")
    A("s_nop 0")
    for i in range(8): A(f"v_cndmask_b32 {v(V0+i)}, 0, {v(vT+2)}, vcc")
    A(f"s_mov_b32 {s(sKSLOT)}, 0")
    A(f"s_mov_b32 {s(sVSLOT)}, 0")
    A(f"s_mov_b32 {s(sCH)}, 0")
    A(f"v_mov_b32 {v(vKA)}, {v(vLANE16)}")
    A(f"v_mov_b32 {v(vK8A)}, {v(vK8B)}")
    A(f"v_mov_b32 {v(vVA)}, {v(vVB)}")
    A("s_waitcnt vmcnt(3)")
    A("s_barrier")
    if stamp: stamp_mid(A, 48)
    read_K(A, 0)
    A("s_waitcnt lgkmcnt(0)")
    A(mfma16(SB[0], K16, Q16, "0"))
    A(mfma8(SB[0], K8, Q8, v(SB[0],16)))
    read_K(A, 1)
    read_V(A, 0)
    A("s_nop 7")
    A("s_nop 3")
    A(".p2align 6")
    A.label(f"{pfx}_loop")
    for tl in range(8):
        tile_body(A, tl, pfx)
    A(f"s_add_u32 {s(sCH)}, {s(sCH)}, 1")
    A(f"s_cmp_lt_u32 {s(sCH)}, 8")
    A(f"s_cbranch_scc1 {pfx}_loop")
    if stamp: stamp_mid(A, 50)
    A("s_waitcnt lgkmcnt(0)")
    A("s_nop 7")
    A("s_nop 7")
    epilogue(A, pfx, stamp)

def epilogue(A, pfx, stamp=False):
    t = vT
    A(f"v_mov_b32 {v(t)}, {v(O+8)}")
    A(f"v_mov_b32 {v(t+1)}, {v(O+8)}")
    A("s_nop 1")
    A(f"v_permlane32_swap_b32 {v(t)}, {v(t+1)}")
    A("s_nop 1")
    A(f"v_mov_b32 {v(t+2)}, 0")
    for i in range(12):
        A(f"v_fma_f32 {v(t+2)}, {v(O+i)}, 0, {v(t+2)}")
    A(f"v_mov_b32 {v(t+3)}, 0x21800000")
    A(f"v_mov_b32 {v(t+4)}, 0x5d800000")
    A(f"v_cmp_nge_f32 {s(sT,2)}, {v(t+1)}, {v(t+3)}")
    A(f"v_cmp_nle_f32 {s(sT+2,2)}, {v(t+1)}, {v(t+4)}")
    A(f"v_cmp_u_f32 vcc, {v(t+2)}, {v(t+2)}")
    A(f"s_or_b64 {s(sT,2)}, {s(sT,2)}, {s(sT+2,2)}")
    A(f"s_or_b64 {s(sT,2)}, {s(sT,2)}, vcc")
    A(f"s_cbranch_scc1 {pfx}_slow")
    A.label(f"{pfx}_fin")
    A(f"v_rcp_f32 {v(t+2)}, {v(t+1)}")
    A("s_nop 0")
    for i in range(12):
        A(f"v_mul_f32 {v(O+i)}, {v(O+i)}, {v(t+2)}")
    for i in range(6):
        A(f"v_cvt_pk_bf16_f32 {v(P+i)}, {v(O+2*i)}, {v(O+2*i+1)}")
    A(f"v_and_b32 {v(t+3)}, 31, v0")
    A(f"v_lshrrev_b32 {v(t+4)}, 5, v0")
    A(f"s_mul_i32 {s(sT)}, {s(sHEAD)}, 5")
    A(f"v_add_u32 {v(t+4)}, {s(sT)}, {v(t+4)}")
    A(f"v_lshrrev_b32 {v(t+5)}, 1, {v(t+4)}")
    A(f"v_lshlrev_b32 {v(t+5)}, 9, {v(t+5)}")
    A(f"v_and_b32 {v(t+4)}, 1, {v(t+4)}")
    A(f"v_lshl_add_u32 {v(t+5)}, {v(t+4)}, 3, {v(t+5)}")
    A(f"v_lshl_add_u32 {v(t+5)}, {v(t+3)}, 4, {v(t+5)}")
    A(f"s_mul_i32 {s(sT+1)}, {s(sQT)}, 40960")
    A(f"s_add_u32 {s(sT+1)}, {s(sT+1)}, {OF}")
    A(f"buffer_store_dwordx2 {v(P,2)}, {v(t+5)}, {s(sSRD,4)}, {s(sT+1)} offen")
    A(f"buffer_store_dwordx2 {v(P+2,2)}, {v(t+5)}, {s(sSRD,4)}, {s(sT+1)} offen offset:512")
    A(f"s_mov_b64 exec, {s(sML,2)}")
    A(f"buffer_store_dwordx2 {v(P+4,2)}, {v(t+5)}, {s(sSRD,4)}, {s(sT+1)} offen offset:1024")
    if stamp: stamp_end(A, sWAVE)
    A("s_endpgm")
    A.label(f"{pfx}_slow")
    M = t + 6; AL = t + 7; TM = t + 8; TM2 = t + 9
    sb = SB[0]
    for i in range(16): A(f"v_mov_b32 {v(O+i)}, 0")
    A(f"v_mov_b32 {v(M)}, 0xff800000")
    A(f"s_mul_i32 {s(sT+3)}, {s(sHEAD)}, {HEADB}")
    A(f"s_add_u32 {s(sT+4)}, {s(sT+3)}, {KF}")
    A(f"s_add_u32 {s(sT+5)}, {s(sT+3)}, {VF}")
    A(f"v_add_u32 {v(t+10)}, 0xffffd800, {v(vVB)}")
    A(f"v_add_u32 {v(t+11)}, 0xfffffc00, {v(vK8B)}")
    A(f"s_mov_b32 {s(sCH)}, 0")
    A.label(f"{pfx}_sl")
    A(f"buffer_load_dwordx4 {v(K16,4)}, {v(vLANE16)}, {s(sSRD,4)}, {s(sT+4)} offen")
    A(f"buffer_load_dwordx2 {v(K8,2)}, {v(t+11)}, {s(sSRD,4)}, {s(sT+4)} offen offset:1024")
    A(f"s_mov_b64 exec, {s(sMV,2)}")
    A(f"buffer_load_dwordx4 {v(V0,4)}, {v(t+10)}, {s(sSRD,4)}, {s(sT+5)} offen")
    A(f"buffer_load_dwordx4 {v(V1,4)}, {v(t+10)}, {s(sSRD,4)}, {s(sT+5)} offen offset:640")
    A(f"s_mov_b64 exec, -1")
    A("s_waitcnt vmcnt(0)")
    A(mfma16(sb, K16, Q16, "0"))
    A(mfma8(sb, K8, Q8, v(sb,16)))
    A("s_nop 7"); A("s_nop 7")
    A(f"v_max3_f32 {v(TM)}, {v(sb)}, {v(sb+1)}, {v(sb+2)}")
    for i in range(3, 15, 2):
        A(f"v_max3_f32 {v(TM)}, {v(TM)}, {v(sb+i)}, {v(sb+i+1)}")
    A(f"v_max_f32 {v(TM)}, {v(TM)}, {v(sb+15)}")
    A(f"v_mov_b32 {v(TM2)}, {v(TM)}")
    A("s_nop 1")
    A(f"v_permlane32_swap_b32 {v(TM)}, {v(TM2)}")
    A("s_nop 1")
    A(f"v_max3_f32 {v(TM)}, {v(TM)}, {v(TM2)}, {v(M)}")
    A(f"v_sub_f32 {v(AL)}, {v(M)}, {v(TM)}")
    A(f"v_exp_f32 {v(AL)}, {v(AL)}")
    A(f"v_mov_b32 {v(M)}, {v(TM)}")
    for i in range(16): A(f"v_sub_f32 {v(sb+i)}, {v(sb+i)}, {v(TM)}")
    for i in range(16): A(f"v_mul_f32 {v(O+i)}, {v(O+i)}, {v(AL)}")
    for i in range(16): E(A, sb, i)
    A("s_nop 0")
    for i in range(8): C(A, sb, i)
    A("s_nop 3")
    A(f"v_mfma_f32_32x32x16_bf16 {v(O,16)}, {v(V0,4)}, {v(P,4)}, {v(O,16)}")
    A(f"v_mfma_f32_32x32x16_bf16 {v(O,16)}, {v(V1,4)}, {v(P+4,4)}, {v(O,16)}")
    A("s_nop 7"); A("s_nop 7")
    A(f"s_add_u32 {s(sT+4)}, {s(sT+4)}, 1280")
    A(f"s_add_u32 {s(sT+5)}, {s(sT+5)}, 1280")
    A(f"s_add_u32 {s(sCH)}, {s(sCH)}, 1")
    A(f"s_cmp_lt_u32 {s(sCH)}, 64")
    A(f"s_cbranch_scc1 {pfx}_sl")
    A(f"v_mov_b32 {v(t)}, {v(O+8)}")
    A(f"v_mov_b32 {v(t+1)}, {v(O+8)}")
    A("s_nop 1")
    A(f"v_permlane32_swap_b32 {v(t)}, {v(t+1)}")
    A("s_nop 1")
    A(f"s_branch {pfx}_fin")
```

```python
from asmlib import *
from layout import *

vLANE16, vKA, vK8A, vVA, vK8B, vVB = 2, 3, 4, 5, 6, 7
QA16, QB16, QA8, QB8 = 8, 12, 16, 18
KB = [(20, 24), (26, 30)]
VB = [(32, 36), (40, 44)]
P = 48
OA, OB = 56, 72
SA, SBb = 88, 104
vT = 120
SLOT = 20480
NSLOT = 4

sWS = 4
sSRD = 8
sWAVE, sHEAD, sQT = 12, 13, 14
sGOFF, sLOFF, sCH = 15, 16, 17
sKSLOT, sVSLOT = 18, 19
sMV = 20
sML = 22
sT = 24
sGRP = 34
STAMP = 0x2000000
ABL = set()

def stamp_start(A):
    A("s_memtime s[40:41]")
    A("s_memrealtime s[42:43]")
def stamp_mid(A, r):
    A(f"s_memtime s[{r}:{r+1}]")
def stamp_end(A, wave_sreg, srd, vt):
    A("s_mov_b64 exec, -1")
    A("s_memtime s[44:45]")
    A("s_memrealtime s[46:47]")
    A("s_waitcnt lgkmcnt(0)")
    A("s_sub_u32 s44, s44, s40")
    A("s_sub_u32 s48, s48, s40")
    A("s_sub_u32 s50, s50, s40")
    A("s_lshl_b32 s52, s2, 4")
    A(f"s_add_u32 s52, s52, s{wave_sreg}")
    A("s_lshl_b32 s52, s52, 5")
    A(f"s_add_u32 s52, s52, {STAMP}")
    A(f"v_mov_b32 v{vt}, s44"); A(f"v_mov_b32 v{vt+1}, s42"); A(f"v_mov_b32 v{vt+2}, s46"); A(f"v_mov_b32 v{vt+3}, s48")
    A(f"v_mov_b32 v{vt+4}, s50"); A(f"v_mov_b32 v{vt+5}, 0")
    A(f"v_mov_b32 v{vt+6}, 0")
    A(f"buffer_store_dwordx4 v[{vt}:{vt+3}], v{vt+6}, {s(srd,4)}, s52 offen")
    A(f"buffer_store_dwordx2 v[{vt+4}:{vt+5}], v{vt+6}, {s(srd,4)}, s52 offen offset:16")

def dma_piece(A, i):
    if i == 0:
        A(f"s_mov_b32 m0, {s(sLOFF)}")
        A("s_nop 0")
    if i == 2: A(f"s_mov_b64 exec, {s(sML,2)}")
    A(f"buffer_load_dwordx4 {v(vLANE16)}, {s(sSRD,4)}, {s(sGOFF)} offen offset:{1024*i} lds")
    if i == 2:
        A(f"s_mov_b64 exec, -1")
        A(f"s_add_u32 {s(sGOFF)}, {s(sGOFF)}, 5120")
        A(f"s_add_u32 {s(sLOFF)}, {s(sLOFF)}, {SLOT}")
        A(f"s_cmp_ge_u32 {s(sLOFF)}, {NSLOT*SLOT}")
        A(f"s_cselect_b32 {s(sT)}, {NSLOT*SLOT}, 0")
        A(f"s_sub_u32 {s(sLOFF)}, {s(sLOFF)}, {s(sT)}")

def next_slot(A, sreg, grpoff):
    A(f"s_add_u32 {s(sreg)}, {s(sreg)}, {SLOT}")
    A(f"s_cmp_ge_u32 {s(sreg)}, {NSLOT*SLOT}")
    A(f"s_cselect_b32 {s(sreg)}, 0, {s(sreg)}")

def read_K(A, tl, buf):
    if 'noread' in ABL: return
    k16, k8 = KB[buf]
    A(f"ds_read_b128 {v(k16,4)}, {v(vKA)} offset:{tl*1280}")
    A(f"ds_read_b64 {v(k8,2)}, {v(vK8A)} offset:{tl*1280}")
def read_V(A, tl, buf):
    if 'noread' in ABL: return
    v0, v1 = VB[buf]
    A(f"s_mov_b64 exec, {s(sMV,2)}")
    A(f"ds_read_b128 {v(v0,4)}, {v(vVA)} offset:{tl*1280}")
    A(f"ds_read_b128 {v(v1,4)}, {v(vVA)} offset:{tl*1280+640}")
    A(f"s_mov_b64 exec, -1")

def E(A, sb, i): A(f"v_exp_f32 {v(sb+i)}, {v(sb+i)}")
def C(A, sb, i): A(f"v_cvt_pk_bf16_f32 {v(P+i)}, {v(sb+2*i)}, {v(sb+2*i+1)}")
def S16(A, d, k, q): A(f"v_mfma_f32_32x32x16_bf16 {v(d,16)}, {v(k,4)}, {v(q,4)}, 0")
def S8(A, d, k, q): A(f"v_mfma_f32_32x32x8_bf16 {v(d,16)}, {v(k,2)}, {v(q,2)}, {v(d,16)}")
def PV(A, o, vv, p): A(f"v_mfma_f32_32x32x16_bf16 {v(o,16)}, {v(vv,4)}, {v(p,4)}, {v(o,16)}")

def barrier_site(A, pfx):
    if 'nobar' in ABL: return
    A(f"s_cmp_ge_u32 {s(sCH)}, 6")
    A(f"s_cbranch_scc1 {pfx}_w0")
    A("s_waitcnt vmcnt(3)")
    A(f"s_branch {pfx}_w1")
    A.label(f"{pfx}_w0")
    A("s_waitcnt vmcnt(0)")
    A.label(f"{pfx}_w1")
    A("s_barrier")

def dma_site(A, i, pfx):
    if 'nodma' in ABL: return
    A(f"s_cmp_ge_u32 {s(sCH)}, 5")
    A(f"s_cbranch_scc1 {pfx}_nd{i}")
    dma_piece(A, i)
    A.label(f"{pfx}_nd{i}")

def half(A, cur, oth, qo16, qo8, kbuf, o_cur, o_prev, v_cur, v_prev, hooks):
    hooks('top')
    E(A, cur, 0); E(A, cur, 1)
    PV(A, o_prev, VB[v_prev][1], P+4)
    hooks('afterdef')
    for i in range(2, 6): E(A, cur, i)
    S16(A, oth, KB[kbuf][0], qo16)
    E(A, cur, 6); E(A, cur, 7)
    for i in range(4): C(A, cur, i)
    S8(A, oth, KB[kbuf][1], qo8)
    hooks('afterS8')
    for i in range(8, 12): E(A, cur, i)
    PV(A, o_cur, VB[v_cur][0], P)
    hooks('afterPV0')
    for i in range(12, 16): E(A, cur, i)
    for i in range(4, 8): C(A, cur, i)

def unit(A, tl, grp, pfx):
    b = tl & 1
    def hooksA(where):
        if where == 'top':
            A("s_waitcnt lgkmcnt(0)")
            if grp == 0 and tl == 2: barrier_site(A, pfx)
        if where == 'afterdef':
            if tl == 3:
                next_slot(A, sVSLOT, 0)
                A(f"v_add_u32 {v(vVA)}, {s(sVSLOT)}, {v(vVB)}")
            read_V(A, (tl + 1) & 3, b ^ 1)
        if where == 'afterS8':
            if tl == 2:
                next_slot(A, sKSLOT, 0)
                A(f"v_add_u32 {v(vKA)}, {s(sKSLOT)}, {v(vLANE16+0) if False else v(vT)}")
                A(f"v_add_u32 {v(vK8A)}, {s(sKSLOT)}, {v(vK8B)}")
            read_K(A, (tl + 2) & 3, b)
        if where == 'afterPV0':
            if grp == 0 and tl == 2: dma_site(A, 0, pfx)
            if grp == 0 and tl == 3: dma_site(A, 2, pfx)
            if grp == 1 and tl == 2: dma_site(A, 1, pfx)
    def hooksB(where):
        if where == 'top':
            if grp == 1 and tl == 1: barrier_site(A, pfx)
        if where == 'afterPV0':
            if grp == 0 and tl == 2: dma_site(A, 1, pfx)
            if grp == 1 and tl == 1: dma_site(A, 0, pfx)
            if grp == 1 and tl == 2: dma_site(A, 2, pfx)
    half(A, SA, SBb, QB16, QB8, b, OA, OB, b, b ^ 1, hooksA)
    half(A, SBb, SA, QA16, QA8, b ^ 1, OB, OA, b, b, hooksB)

def gen_attn(A, pfx="at", stamp=False):
    A.c("---- attention: wg -> (head, qblock)")
    if stamp: stamp_start(A)
    A(f"s_load_dwordx2 {s(sWS,2)}, s[0:1], {KARG['ws']}")
    A("v_lshrrev_b32 v1, 6, v0")
    A(f"v_and_b32 v0, 63, v0")
    A(f"v_readfirstlane_b32 {s(sWAVE)}, v1")
    A(f"s_and_b32 {s(sT)}, s2, 7")
    A(f"s_lshr_b32 {s(sT+1)}, s2, 3")
    A(f"s_lshr_b32 {s(sT+2)}, {s(sT+1)}, 3")
    A(f"s_lshl_b32 {s(sHEAD)}, {s(sT)}, 2")
    A(f"s_add_u32 {s(sHEAD)}, {s(sHEAD)}, {s(sT+2)}")
    A(f"s_and_b32 {s(sT+1)}, {s(sT+1)}, 7")
    A(f"s_lshr_b32 {s(sGRP)}, {s(sWAVE)}, 2")
    A(f"s_and_b32 {s(sT+4)}, {s(sWAVE)}, 3")
    A(f"s_lshl_b32 {s(sQT)}, {s(sT+1)}, 2")
    A(f"s_add_u32 {s(sQT)}, {s(sQT)}, {s(sT+4)}")
    A(f"s_lshl_b32 {s(sQT)}, {s(sQT)}, 1")
    A(f"v_lshlrev_b32 {v(vLANE16)}, 4, v0")
    A(f"v_and_b32 {v(vT+1)}, 31, v0")
    A(f"v_lshrrev_b32 {v(vT+2)}, 5, v0")
    A(f"v_lshlrev_b32 {v(vK8B)}, 3, {v(vT+1)}")
    A(f"v_mul_u32_u24 {v(vVB)}, 320, {v(vT+2)}")
    A(f"v_lshl_add_u32 {v(vVB)}, {v(vT+1)}, 4, {v(vVB)}")
    A(f"s_mov_b32 {s(sMV)}, 0x000FFFFF")
    A(f"s_mov_b32 {s(sMV+1)}, 0x000FFFFF")
    A(f"s_mov_b32 {s(sML)}, -1")
    A(f"s_mov_b32 {s(sML+1)}, 0")
    A(f"s_mul_i32 {s(sT+3)}, {s(sHEAD)}, {HEADB}")
    A("s_waitcnt lgkmcnt(0)")
    A(f"s_mov_b32 {s(sSRD)}, {s(sWS)}")
    A(f"s_and_b32 {s(sSRD+1)}, {s(sWS+1)}, 0xffff")
    A(f"s_mov_b32 {s(sSRD+2)}, {WS_USED}")
    A(f"s_mov_b32 {s(sSRD+3)}, 0x20000")
    A(f"s_and_b32 {s(sT)}, {s(sT+4)}, 1")
    A(f"s_mul_i32 {s(sT)}, {s(sT)}, 2560")
    A(f"s_cmp_ge_u32 {s(sT+4)}, 2")
    A(f"s_cselect_b32 {s(sT+1)}, {VF-KF}, 0")
    A(f"s_add_u32 {s(sT+1)}, {s(sT+1)}, {KF}")
    A(f"s_add_u32 {s(sGOFF)}, {s(sT)}, {s(sT+1)}")
    A(f"s_add_u32 {s(sGOFF)}, {s(sGOFF)}, {s(sT+3)}")
    A(f"s_mul_i32 {s(sT)}, {s(sGRP)}, 40960")
    A(f"s_add_u32 {s(sGOFF)}, {s(sGOFF)}, {s(sT)}")
    A(f"s_mul_i32 {s(sLOFF)}, {s(sWAVE)}, 2560")
    for i in range(3): dma_piece(A, i)
    A(f"s_mul_i32 {s(sT+1)}, {s(sQT)}, 1280")
    A(f"s_add_u32 {s(sT+1)}, {s(sT+1)}, {s(sT+3)}")
    if QF: A(f"s_add_u32 {s(sT+1)}, {s(sT+1)}, {QF}")
    for r in (QA8, QA8+1, QB8, QB8+1): A(f"v_mov_b32 {v(r)}, 0")
    A(f"buffer_load_dwordx4 {v(QA16,4)}, {v(vLANE16)}, {s(sSRD,4)}, {s(sT+1)} offen")
    A(f"buffer_load_dwordx4 {v(QB16,4)}, {v(vLANE16)}, {s(sSRD,4)}, {s(sT+1)} offen offset:1280")
    A(f"s_mov_b64 exec, {s(sML,2)}")
    A(f"buffer_load_dwordx2 {v(QA8,2)}, {v(vK8B)}, {s(sSRD,4)}, {s(sT+1)} offen offset:1024")
    A(f"buffer_load_dwordx2 {v(QB8,2)}, {v(vK8B)}, {s(sSRD,4)}, {s(sT+1)} offen offset:2304")
    A(f"s_mov_b64 exec, -1")
    for c in range(2):
        for i in range(3): dma_piece(A, i)
    A(f"s_mul_i32 {s(sT)}, {s(sGRP)}, 10240")
    A(f"v_add_u32 {v(vT)}, {s(sT)}, {v(vLANE16)}")
    A(f"s_add_u32 {s(sT+1)}, {s(sT)}, 1024")
    A(f"v_add_u32 {v(vK8B)}, {s(sT+1)}, {v(vK8B)}")
    A(f"s_add_u32 {s(sT+1)}, {s(sT)}, 5120")
    A(f"v_add_u32 {v(vVB)}, {s(sT+1)}, {v(vVB)}")
    for i in range(32): A(f"v_mov_b32 {v(OA+i)}, 0")
    for i in range(4, 8): A(f"v_mov_b32 {v(P+i)}, 0")
    A(f"v_cmp_eq_u32 vcc, 20, {v(vT+1)}")
    A(f"v_mov_b32 {v(vT+2)}, 0x3f803f80")
    A("s_nop 0")
    for i in range(16): A(f"v_cndmask_b32 {v(VB[0][0]+i)}, 0, {v(vT+2)}, vcc")
    A(f"s_mov_b32 {s(sKSLOT)}, 0")
    A(f"s_mov_b32 {s(sVSLOT)}, 0")
    A(f"s_mov_b32 {s(sCH)}, 0")
    A(f"v_mov_b32 {v(vKA)}, {v(vT)}")
    A(f"v_mov_b32 {v(vK8A)}, {v(vK8B)}")
    A(f"v_mov_b32 {v(vVA)}, {v(vVB)}")
    A("s_waitcnt vmcnt(6)")
    A("s_barrier")
    if stamp: stamp_mid(A, 48)
    read_K(A, 0, 0)
    read_K(A, 1, 1)
    read_V(A, 0, 0)
    A("s_waitcnt lgkmcnt(0)")
    S16(A, SA, KB[0][0], QA16)
    S8(A, SA, KB[0][1], QA8)
    A("s_nop 7")
    A("s_nop 3")
    A(f"s_cmp_eq_u32 {s(sGRP)}, 1")
    A(f"s_cbranch_scc1 {pfx}_g1")
    for grp in range(2):
        A(".p2align 6")
        A.label(f"{pfx}_g{grp}")
        for tl in range(4):
            unit(A, tl, grp, f"{pfx}g{grp}")
        A(f"s_add_u32 {s(sCH)}, {s(sCH)}, 1")
        A(f"s_cmp_lt_u32 {s(sCH)}, 8")
        A(f"s_cbranch_scc1 {pfx}_g{grp}")
        if grp == 0: A(f"s_branch {pfx}_done")
    A.label(f"{pfx}_done")
    A("s_nop 1")
    PV(A, OB, VB[1][1], P+4)
    if stamp: stamp_mid(A, 50)
    A("s_waitcnt lgkmcnt(0)")
    A("s_barrier")
    A("s_nop 7"); A("s_nop 3")
    A(f"s_and_b32 {s(sT)}, {s(sWAVE)}, 3")
    A(f"s_mul_i32 {s(sT)}, {s(sT)}, 6144")
    A(f"s_mul_i32 {s(sT+1)}, {s(sGRP)}, 3072")
    A(f"s_add_u32 {s(sT+2)}, {s(sT)}, {s(sT+1)}")
    A(f"s_xor_b32 {s(sT+1)}, {s(sGRP)}, 1")
    A(f"s_mul_i32 {s(sT+1)}, {s(sT+1)}, 3072")
    A(f"s_add_u32 {s(sT+3)}, {s(sT)}, {s(sT+1)}")
    A(f"v_add_u32 {v(vT)}, {s(sT+2)}, {v(vLANE16)}")
    A(f"v_add_u32 {v(vT+1)}, {s(sT+3)}, {v(vLANE16)}")
    A(f"s_cmp_eq_u32 {s(sGRP)}, 1")
    A(f"s_cbranch_scc1 {pfx}_x1")
    for j in range(3): A(f"ds_write_b128 {v(vT)}, {v(OB+4*j,4)} offset:{1024*j}")
    A(f"s_branch {pfx}_x2")
    A.label(f"{pfx}_x1")
    for j in range(3): A(f"ds_write_b128 {v(vT)}, {v(OA+4*j,4)} offset:{1024*j}")
    A("s_waitcnt lgkmcnt(0)")
    for i in range(12): A(f"v_mov_b32 {v(OA+i)}, {v(OB+i)}")
    for i in range(4): A(f"v_mov_b32 {v(QA16+i)}, {v(QB16+i)}")
    for i in range(2): A(f"v_mov_b32 {v(QA8+i)}, {v(QB8+i)}")
    A(f"s_add_u32 {s(sQT)}, {s(sQT)}, 1")
    A.label(f"{pfx}_x2")
    A("s_waitcnt lgkmcnt(0)")
    A("s_barrier")
    for j in range(3): A(f"ds_read_b128 {v(SA+4*j,4)}, {v(vT+1)} offset:{1024*j}")
    A("s_waitcnt lgkmcnt(0)")
    for i in range(12): A(f"v_add_f32 {v(OA+i)}, {v(OA+i)}, {v(SA+i)}")
    epilogue(A, pfx, stamp)

def epilogue(A, pfx, stamp=False):
    O = OA
    t = vT
    A(f"v_mov_b32 {v(t)}, {v(O+8)}")
    A(f"v_mov_b32 {v(t+1)}, {v(O+8)}")
    A("s_nop 1")
    A(f"v_permlane32_swap_b32 {v(t)}, {v(t+1)}")
    A("s_nop 1")
    A(f"v_mov_b32 {v(t+2)}, 0")
    for i in range(12):
        A(f"v_fma_f32 {v(t+2)}, {v(O+i)}, 0, {v(t+2)}")
    A(f"v_mov_b32 {v(t+3)}, 0x21800000")
    A(f"v_mov_b32 {v(t+4)}, 0x5d800000")
    A(f"v_cmp_nge_f32 {s(sT,2)}, {v(t+1)}, {v(t+3)}")
    A(f"v_cmp_nle_f32 {s(sT+2,2)}, {v(t+1)}, {v(t+4)}")
    A(f"v_cmp_u_f32 vcc, {v(t+2)}, {v(t+2)}")
    A(f"s_or_b64 {s(sT,2)}, {s(sT,2)}, {s(sT+2,2)}")
    A(f"s_or_b64 {s(sT,2)}, {s(sT,2)}, vcc")
    A(f"s_cbranch_scc1 {pfx}_slow")
    A.label(f"{pfx}_fin")
    A(f"v_rcp_f32 {v(t+2)}, {v(t+1)}")
    A("s_nop 0")
    for i in range(12):
        A(f"v_mul_f32 {v(O+i)}, {v(O+i)}, {v(t+2)}")
    for i in range(6):
        A(f"v_cvt_pk_bf16_f32 {v(P+i)}, {v(O+2*i)}, {v(O+2*i+1)}")
    A(f"v_and_b32 {v(t+3)}, 31, v0")
    A(f"v_lshrrev_b32 {v(t+4)}, 5, v0")
    A(f"s_mul_i32 {s(sT)}, {s(sHEAD)}, 5")
    A(f"v_add_u32 {v(t+4)}, {s(sT)}, {v(t+4)}")
    A(f"v_lshrrev_b32 {v(t+5)}, 1, {v(t+4)}")
    A(f"v_lshlrev_b32 {v(t+5)}, 9, {v(t+5)}")
    A(f"v_and_b32 {v(t+4)}, 1, {v(t+4)}")
    A(f"v_lshl_add_u32 {v(t+5)}, {v(t+4)}, 3, {v(t+5)}")
    A(f"v_lshl_add_u32 {v(t+5)}, {v(t+3)}, 4, {v(t+5)}")
    A(f"s_mul_i32 {s(sT+1)}, {s(sQT)}, 40960")
    A(f"s_add_u32 {s(sT+1)}, {s(sT+1)}, {OF}")
    A(f"buffer_store_dwordx2 {v(P,2)}, {v(t+5)}, {s(sSRD,4)}, {s(sT+1)} offen")
    A(f"buffer_store_dwordx2 {v(P+2,2)}, {v(t+5)}, {s(sSRD,4)}, {s(sT+1)} offen offset:512")
    A(f"s_mov_b64 exec, {s(sML,2)}")
    A(f"buffer_store_dwordx2 {v(P+4,2)}, {v(t+5)}, {s(sSRD,4)}, {s(sT+1)} offen offset:1024")
    if stamp: stamp_end(A, sWAVE, sSRD, 100)
    A("s_endpgm")
    A.label(f"{pfx}_slow")
    M, AL, TM, TM2 = SBb, SBb+1, SBb+2, SBb+3
    vKo, vVo = SBb+4, SBb+5
    sb = SA
    K16, K8 = KB[0]; V0, V1 = VB[0]
    for i in range(16): A(f"v_mov_b32 {v(O+i)}, 0")
    A(f"v_mov_b32 {v(M)}, 0xff800000")
    A(f"s_mul_i32 {s(sT+3)}, {s(sHEAD)}, {HEADB}")
    A(f"s_add_u32 {s(sT+4)}, {s(sT+3)}, {KF}")
    A(f"s_add_u32 {s(sT+5)}, {s(sT+3)}, {VF}")
    A(f"v_and_b32 {v(vKo)}, 31, v0")
    A(f"v_lshrrev_b32 {v(vVo)}, 5, v0")
    A(f"v_mul_u32_u24 {v(vVo)}, 320, {v(vVo)}")
    A(f"v_lshl_add_u32 {v(vVo)}, {v(vKo)}, 4, {v(vVo)}")
    A(f"v_lshlrev_b32 {v(vKo)}, 3, {v(vKo)}")
    A(f"s_mov_b32 {s(sCH)}, 0")
    A.label(f"{pfx}_sl")
    A(f"buffer_load_dwordx4 {v(K16,4)}, {v(vLANE16)}, {s(sSRD,4)}, {s(sT+4)} offen")
    A(f"buffer_load_dwordx2 {v(K8,2)}, {v(vKo)}, {s(sSRD,4)}, {s(sT+4)} offen offset:1024")
    A(f"s_mov_b64 exec, {s(sMV,2)}")
    A(f"buffer_load_dwordx4 {v(V0,4)}, {v(vVo)}, {s(sSRD,4)}, {s(sT+5)} offen")
    A(f"buffer_load_dwordx4 {v(V1,4)}, {v(vVo)}, {s(sSRD,4)}, {s(sT+5)} offen offset:640")
    A(f"s_mov_b64 exec, -1")
    A("s_waitcnt vmcnt(0)")
    S16(A, sb, K16, QA16)
    S8(A, sb, K8, QA8)
    A("s_nop 7"); A("s_nop 7")
    A(f"v_max3_f32 {v(TM)}, {v(sb)}, {v(sb+1)}, {v(sb+2)}")
    for i in range(3, 15, 2):
        A(f"v_max3_f32 {v(TM)}, {v(TM)}, {v(sb+i)}, {v(sb+i+1)}")
    A(f"v_max_f32 {v(TM)}, {v(TM)}, {v(sb+15)}")
    A(f"v_mov_b32 {v(TM2)}, {v(TM)}")
    A("s_nop 1")
    A(f"v_permlane32_swap_b32 {v(TM)}, {v(TM2)}")
    A("s_nop 1")
    A(f"v_max3_f32 {v(TM)}, {v(TM)}, {v(TM2)}, {v(M)}")
    A(f"v_sub_f32 {v(AL)}, {v(M)}, {v(TM)}")
    A(f"v_exp_f32 {v(AL)}, {v(AL)}")
    A(f"v_mov_b32 {v(M)}, {v(TM)}")
    for i in range(16): A(f"v_sub_f32 {v(sb+i)}, {v(sb+i)}, {v(TM)}")
    for i in range(16): A(f"v_mul_f32 {v(O+i)}, {v(O+i)}, {v(AL)}")
    for i in range(16): E(A, sb, i)
    A("s_nop 0")
    for i in range(8): C(A, sb, i)
    A("s_nop 3")
    PV(A, O, V0, P)
    PV(A, O, V1, P+4)
    A("s_nop 7"); A("s_nop 7")
    A(f"s_add_u32 {s(sT+4)}, {s(sT+4)}, 1280")
    A(f"s_add_u32 {s(sT+5)}, {s(sT+5)}, 1280")
    A(f"s_add_u32 {s(sCH)}, {s(sCH)}, 1")
    A(f"s_cmp_lt_u32 {s(sCH)}, 64")
    A(f"s_cbranch_scc1 {pfx}_sl")
    A(f"v_mov_b32 {v(t)}, {v(O+8)}")
    A(f"v_mov_b32 {v(t+1)}, {v(O+8)}")
    A("s_nop 1")
    A(f"v_permlane32_swap_b32 {v(t)}, {v(t+1)}")
    A("s_nop 1")
    A(f"s_branch {pfx}_fin")
```

```python
from asmlib import *
from layout import *
from gemm import G1, G2, mfma
from k1 import make_srd, f32bits

BPQ = 64 * 20 * 2048

def ffn_ids(A, T, sRB, sKQ, sMEM, idreg="s2", base=0):
    if base: A(f"s_sub_u32 {s(T+5)}, {idreg}, {base}"); idreg = s(T+5)
    A(f"s_and_b32 {s(T)}, {idreg}, 7")
    A(f"s_lshr_b32 {s(T+1)}, {idreg}, 3")
    A(f"s_and_b32 {s(sKQ)}, {s(T)}, 3")
    A(f"s_lshr_b32 {s(T+2)}, {s(T)}, 2")
    A(f"s_lshl_b32 {s(T+2)}, {s(T+2)}, 3")
    A(f"s_lshr_b32 {s(T+3)}, {s(T+1)}, 2")
    A(f"s_add_u32 {s(sRB)}, {s(T+2)}, {s(T+3)}")
    A(f"s_and_b32 {s(sMEM)}, {s(T+1)}, 3")

def gen_ffn1(A, P, sRB, sKQ, sMEM, stamp=None, store_mod="", end=True):
    g = G1(P, BN=96, BK=32, R=5, NS=20, ldx=1280, ldw=3072, WM=4, WN=1)
    T = g.sT
    sJ = 46
    A(f"s_load_dwordx2 s[4:5], s[0:1], {KARG['A_x']}")
    A(f"s_load_dwordx2 s[6:7], s[0:1], {KARG['B_w1']}")
    A(f"s_load_dwordx2 s[48:49], s[0:1], {KARG['B_b1']}")
    A(f"s_lshl_b32 {s(sJ)}, {s(sKQ)}, 2")
    A(f"s_add_u32 {s(sJ)}, {s(sJ)}, {s(sMEM)}")
    A(f"s_mul_i32 {s(g.sXOFF)}, {s(sRB)}, {128*1280}")
    A(f"s_mul_i32 {s(g.sWOFF)}, {s(sJ)}, 192")
    A("s_waitcnt lgkmcnt(0)")
    make_srd(A, g.sXSRD, 4, S*D*2)
    make_srd(A, g.sWSRD, 6, D*F*2)
    make_srd(A, g.sOSRD, 44, WS_USED)
    A(f"s_cmp_ge_u32 {s(g.sWAVE)}, 4")
    A(f"s_cbranch_scc1 {P}_loader")
    make_srd(A, 52, 48, F*2)
    t = g.vT
    A(f"v_lshrrev_b32 {v(t)}, 5, v0")
    A(f"v_lshlrev_b32 {v(t)}, 3, {v(t)}")
    A(f"s_mul_i32 {s(T)}, {s(sJ)}, 192")
    for nb in range(3):
        for gg in range(4):
            A(f"buffer_load_dwordx2 {v(g.vACC + nb*16 + 4*gg + 2, 2)}, {v(t)}, s[52:55], {s(T)} offen offset:{64*nb + 16*gg}")
    g.compute_setup(A)
    A("s_waitcnt vmcnt(0)")
    for nb in range(3):
        for gg in range(4):
            a = g.vACC + nb*16 + 4*gg
            A(f"v_lshlrev_b32 {v(a)}, 16, {v(a+2)}")
            A(f"v_and_b32 {v(a+1)}, 0xffff0000, {v(a+2)}")
            A(f"v_lshlrev_b32 {v(a+2)}, 16, {v(a+3)}")
            A(f"v_and_b32 {v(a+3)}, 0xffff0000, {v(a+3)}")
    g.compute(A, 'T', acc_init=True)
    if stamp: stamp.mid(A, 0)
    A(f"s_lshl_b32 {s(T)}, {s(sRB)}, 2")
    A(f"s_add_u32 {s(T)}, {s(T)}, {s(g.sWAVE)}")
    A(f"s_mul_i32 {s(T)}, {s(T)}, {96*1024}")
    A(f"s_mul_i32 {s(T+1)}, {s(sJ)}, {6*1024}")
    A(f"s_add_u32 {s(T)}, {s(T)}, {s(T+1)}")
    A(f"s_add_u32 {s(T)}, {s(T)}, {HF}")
    A(f"v_lshlrev_b32 {v(t)}, 4, v0")
    A("s_nop 7")
    A("s_nop 3")
    for nb in range(3):
        for m in range(2):
            a = g.vACC + nb*16 + 8*m
            d0 = t + 2 + 4*((nb*2+m) & 1)
            for i in range(8): A(f"v_max_f32 {v(a+i)}, 0, {v(a+i)}")
            for i in range(8): A(f"v_mul_f32 {v(a+i)}, {v(a+i)}, {v(a+i)}")
            for i in range(4): A(f"v_cvt_pk_bf16_f32 {v(d0+i)}, {v(a+2*i)}, {v(a+2*i+1)}")
            st = 2*nb + m
            if st == 4: A(f"s_add_u32 {s(T)}, {s(T)}, 4096")
            A(f"buffer_store_dwordx4 {v(d0,4)}, {v(t)}, {s(g.sOSRD,4)}, {s(T)} offen offset:{(st%4)*1024} {store_mod}")
    if end:
        if stamp: stamp.end(A, g.sWAVE, g.sOSRD, t+16)
        A("s_endpgm")
    else:
        A(f"s_branch {P}_done")
    A.label(f"{P}_loader")
    g.loader(A)
    if end: A("s_endpgm")
    else: A.label(f"{P}_done")
    return g

def gen_ffn2(A, P, sRB, sKQ, sMEM, stamp=None, load_mod=""):
    g = G2(P, BN=160, BK=64, R=4, NS=6, ldw=1280, kperm=True, mode='roll', PD=4)
    T = g.sT
    A(f"s_load_dwordx2 s[6:7], s[0:1], {KARG['B_w2']}")
    A(f"s_mul_i32 {s(g.sWOFF)}, {s(sKQ)}, {384*1280}")
    A(f"s_mul_i32 {s(T)}, {s(sMEM)}, 320")
    A(f"s_add_u32 {s(g.sWOFF)}, {s(g.sWOFF)}, {s(T)}")
    A("s_waitcnt lgkmcnt(0)")
    make_srd(A, g.sWSRD, 6, F*D*2)
    make_srd(A, g.sXSRD, 44, WS_USED)
    make_srd(A, g.sOSRD, 44, WS_USED)
    A(f"s_cmp_ge_u32 {s(g.sWAVE)}, 4")
    A(f"s_cbranch_scc1 {P}_loader")
    A(f"s_lshl_b32 {s(T)}, {s(sRB)}, 2")
    A(f"s_add_u32 {s(T)}, {s(T)}, {s(g.sWAVE)}")
    A(f"s_mul_i32 {s(g.sXOFF)}, {s(T)}, {96*1024}")
    A(f"s_mul_i32 {s(T+1)}, {s(sKQ)}, {24*1024}")
    A(f"s_add_u32 {s(g.sXOFF)}, {s(g.sXOFF)}, {s(T+1)}")
    A(f"s_add_u32 {s(g.sXOFF)}, {s(g.sXOFF)}, {HF}")
    A(f"s_mov_b32 s47, {s(T)}")
    g.compute_setup(A)
    g.compute(A, 'T', xpre=False)
    if stamp: stamp.mid(A, 0)
    t = g.vT
    A(f"s_mul_i32 {s(T)}, s47, 40960")
    A(f"s_mul_i32 {s(T+1)}, {s(sKQ)}, {BPQ}")
    A(f"s_add_u32 {s(T)}, {s(T)}, {s(T+1)}")
    A(f"s_mul_i32 {s(T+1)}, {s(sMEM)}, {5*2048}")
    A(f"s_add_u32 {s(T)}, {s(T)}, {s(T+1)}")
    A(f"s_add_u32 {s(T)}, {s(T)}, {BP}")
    A("s_nop 7")
    A("s_nop 3")
    for j in range(5):
        for m in range(2):
            a = g.vACC + j*16 + 8*m
            d0 = g.vXF + 4*((j*2+m) & 1)
            for i in range(4): A(f"v_cvt_pk_bf16_f32 {v(d0+i)}, {v(a+2*i)}, {v(a+2*i+1)}")
            st = 2*j + m
            if st and st % 4 == 0: A(f"s_add_u32 {s(T)}, {s(T)}, 4096")
            A(f"buffer_store_dwordx4 {v(d0,4)}, {v(g.vL16)}, {s(g.sOSRD,4)}, {s(T)} offen offset:{(st%4)*1024}")
            A("s_nop 0")
    if stamp: stamp.end(A, g.sWAVE, g.sOSRD, g.vXF+8)
    A("s_endpgm")
    A.label(f"{P}_loader")
    g.loader(A)
    A("s_endpgm")
    return g

def common_entry(A, P, nwg, stamp=None):
    A(f"s_cmp_ge_u32 s2, {nwg}")
    A(f"s_cbranch_scc1 {P}_exit")
    if stamp: stamp.start(A)
    A(f"s_load_dwordx2 s[44:45], s[0:1], {KARG['ws']}")
    A("v_lshrrev_b32 v1, 6, v0")
    A("v_and_b32 v0, 63, v0")
    A(f"v_readfirstlane_b32 s20, v1")

def gen_k3(A, P="k3", stamp=None):
    g = G2(P, BN=64, BK=64, R=5, NS=10, ldw=1280, kperm=False, mode='dbl', PD=6)
    T = g.sT
    sRB, sCB = 40, 41
    common_entry(A, P, 160, stamp)
    A(f"s_load_dwordx2 s[6:7], s[0:1], {KARG['A_wo']}")
    A(f"s_load_dwordx2 s[48:49], s[0:1], {KARG['B_b2']}")
    A(f"s_load_dwordx2 s[50:51], s[0:1], {KARG['out']}")
    A(f"s_and_b32 {s(T)}, s2, 7")
    A(f"s_lshr_b32 {s(T+1)}, s2, 3")
    A(f"s_lshl_b32 {s(sRB)}, {s(T)}, 1")
    A(f"s_and_b32 {s(T+2)}, {s(T+1)}, 1")
    A(f"s_add_u32 {s(sRB)}, {s(sRB)}, {s(T+2)}")
    A(f"s_lshr_b32 {s(sCB)}, {s(T+1)}, 1")
    A(f"s_lshl_b32 {s(g.sWOFF)}, {s(sCB)}, 7")
    A("s_waitcnt lgkmcnt(0)")
    make_srd(A, g.sWSRD, 6, D*D*2)
    make_srd(A, g.sXSRD, 44, WS_USED)
    make_srd(A, g.sOSRD, 50, S*D*2)
    A(f"s_cmp_ge_u32 {s(g.sWAVE)}, 4")
    A(f"s_cbranch_scc1 {P}_loader")
    A(f"s_lshl_b32 {s(T)}, {s(sRB)}, 2")
    A(f"s_add_u32 {s(T)}, {s(T)}, {s(g.sWAVE)}")
    A(f"s_mul_i32 {s(g.sXOFF)}, {s(T)}, 40960")
    A(f"s_add_u32 {s(g.sXOFF)}, {s(g.sXOFF)}, {OF}")
    A(f"s_mov_b32 s47, {s(T)}")
    g.compute_setup(A)
    g.prefetch_x(A)
    t = g.vT
    EP = t + 8
    B2 = EP + 64
    GV = B2 + 16
    g.compute(A, 'T', xpre=True)
    if stamp: stamp.mid(A, 0)
    make_srd(A, 52, 48, D*2)
    A(f"s_mul_i32 {s(T)}, s47, 40960")
    A(f"s_lshl_b32 {s(T+1)}, {s(sCB)}, 12")
    A(f"s_add_u32 {s(T)}, {s(T)}, {s(T+1)}")
    A(f"s_add_u32 {s(T)}, {s(T)}, {BP}")
    for kq in range(4):
        for j in range(2):
            for m in range(2):
                A(f"buffer_load_dwordx4 {v(EP + ((j*2+m)*4 + kq)*4, 4)}, {v(g.vL16)}, {s(g.sXSRD,4)}, {s(T)} offen offset:{j*2048+m*1024}")
        if kq < 3: A(f"s_add_u32 {s(T)}, {s(T)}, {BPQ}")
    A(f"v_lshrrev_b32 {v(t)}, 5, v0")
    A(f"v_lshlrev_b32 {v(t)}, 3, {v(t)}")
    A(f"s_lshl_b32 {s(T+1)}, {s(sCB)}, 7")
    for j in range(2):
        for gg in range(4):
            A(f"buffer_load_dwordx2 {v(B2 + (j*4+gg)*2, 2)}, {v(t)}, s[52:55], {s(T+1)} offen offset:{64*j+16*gg}")
    A(f"v_and_b32 {v(t+1)}, 31, v0")
    A(f"s_lshl_b32 {s(T+2)}, s47, 5")
    A(f"v_add_u32 {v(t+1)}, {s(T+2)}, {v(t+1)}")
    A(f"v_lshlrev_b32 {v(t+2)}, 2, {v(t+1)}")
    A(f"v_add_u32 {v(t+2)}, {GATE}, {v(t+2)}")
    A(f"buffer_load_dword {v(GV)}, {v(t+2)}, {s(g.sXSRD,4)}, 0 offen")
    A(f"v_mul_u32_u24 {v(t+3)}, 1280, {v(t+1)}")
    A(f"v_lshl_add_u32 {v(t+3)}, {v(t)}, 1, {v(t+3)}")
    A(f"s_lshl_b32 {s(T+3)}, {s(sCB)}, 7")
    A("s_waitcnt vmcnt(0)")
    A(f"v_sub_f32 {v(GV+1)}, 1.0, {v(GV)}")
    A(f"v_cvt_pk_bf16_f32 {v(GV+1)}, {v(GV+1)}, {v(GV+1)}")
    A(f"v_lshlrev_b32 {v(GV+1)}, 16, {v(GV+1)}")
    for j in range(2):
        for m in range(2):
            a = g.vACC + j*16 + 8*m
            for i in range(4):
                gg = 2*m + (i >> 1)
                b2r = B2 + (j*4+gg)*2 + (i & 1)
                lo, hi = t+4, t+5
                A(f"v_lshlrev_b32 {v(lo)}, 16, {v(b2r)}")
                A(f"v_and_b32 {v(hi)}, 0xffff0000, {v(b2r)}")
                for kq in range(4):
                    p = EP + ((j*2+m)*4 + kq)*4 + i
                    A(f"v_lshlrev_b32 {v(t+6)}, 16, {v(p)}")
                    A(f"v_and_b32 {v(t+7)}, 0xffff0000, {v(p)}")
                    A(f"v_add_f32 {v(lo)}, {v(lo)}, {v(t+6)}")
                    A(f"v_add_f32 {v(hi)}, {v(hi)}, {v(t+7)}")
                A(f"v_mul_f32 {v(lo)}, {v(lo)}, {v(GV+1)}")
                A(f"v_mul_f32 {v(hi)}, {v(hi)}, {v(GV+1)}")
                A(f"v_fma_f32 {v(a+2*i)}, {v(a+2*i)}, {v(GV)}, {v(lo)}")
                A(f"v_fma_f32 {v(a+2*i+1)}, {v(a+2*i+1)}, {v(GV)}, {v(hi)}")
            d0 = EP + (j*2+m)*16
            for i in range(4): A(f"v_cvt_pk_bf16_f32 {v(d0+i)}, {v(a+2*i)}, {v(a+2*i+1)}")
            A("s_nop 1")
            A(f"v_permlane32_swap_b32 {v(d0)}, {v(d0+2)}")
            A(f"v_permlane32_swap_b32 {v(d0+1)}, {v(d0+3)}")
            A("s_nop 1")
            A(f"buffer_store_dwordx4 {v(d0,4)}, {v(t+3)}, {s(g.sOSRD,4)}, {s(T+3)} offen offset:{64*j+32*m}")
    if stamp: stamp.end(A, g.sWAVE, g.sXSRD, t+4 if (t+4) % 2 == 0 else t+5)
    A("s_endpgm")
    A.label(f"{P}_loader")
    g.loader(A)
    A.label(f"{P}_exit")
    A("s_endpgm")
    return g, GV + 2
```

```python
from asmlib import *
from layout import *

def mfma(d, aa, bb, cc):
    return f"v_mfma_f32_32x32x16_bf16 {v(d,16)}, {v(aa,4)}, {v(bb,4)}, {cc}"

ABL = set()
class G1:
    sXSRD, sWSRD, sOSRD = 8, 12, 16
    sWAVE, sXOFF, sWOFF, sLDS = 20, 21, 22, 23
    sT = 24
    def __init__(self, pfx, BN, BK, R, NS, ldx, ldw, WM, WN, kperm=False):
        self.pfx, self.BM, self.BN, self.BK, self.R, self.NS = pfx, 128, BN, BK, R, NS
        self.ldx, self.ldw = ldx, ldw
        self.WM, self.WN = WM, WN
        self.TM = 128 // 32 // WM
        self.TN = BN // 32 // WN
        self.KS = BK // 16
        self.XB = 128 * BK * 2
        self.WB = BK * BN * 2
        self.SLOT = self.XB + self.WB
        self.RB = BN * 2
        self.wswz = (self.RB % 256 == 0)
        self.kperm = kperm
        self.nx = self.XB // 1024 // 4
        wbytes = self.WB // 4
        self.nw_full = wbytes // 1024
        self.w_tail = (wbytes % 1024) // 16
        self.nw = self.nw_full + (1 if self.w_tail else 0)
        self.n = self.nx + self.nw
        assert self.nx <= 4 and self.nw <= 4
        r = 2
        self.vXA = r; r += self.KS
        self.nWA = self.TN if self.wswz else 1
        self.vWA = r; r += self.nWA
        self.hi = (self.R * self.SLOT > 65536)
        self.nhi = (self.R * self.SLOT + 65535) // 65536 - 1
        self.vHI = r; r += self.nhi * (self.KS + self.nWA)
        r = (r + 1) // 2 * 2
        self.vXF = r; r += 2 * self.TM * 4
        self.vWF = r; r += 2 * self.TN * 4
        self.vACC = r; r += self.TM * self.TN * 16
        self.vT = r
        self.vLX = 2
        self.vLW = 6

    def xaddr(self, off, s):
        h = off >> 16
        base = self.vXA + s if h == 0 else self.vHI + (h - 1) * (self.KS + self.nWA) + s
        return base, off & 0xffff
    def waddr(self, off, j):
        h = off >> 16
        jj = j if self.wswz else 0
        base = self.vWA + jj if h == 0 else self.vHI + (h - 1) * (self.KS + self.nWA) + self.KS + jj
        return base, off & 0xffff

    def loader(self, A, extra_end=None):
        p, T = self.pfx, self.sT
        rowb = self.BK * 2
        cpr = rowb // 16
        rpi = 64 // cpr
        A.c("---- loader wave")
        A(f"s_sub_u32 {s(T)}, {s(self.sWAVE)}, 4")
        t0, t1, t2, t3 = 10, 11, 12, 13
        A(f"v_lshrrev_b32 {v(t0)}, {cpr.bit_length()-1}, v0")
        A(f"v_and_b32 {v(t1)}, {cpr-1}, v0")
        for j in range(self.nx):
            A(f"s_mul_i32 {s(T+1)}, {s(T)}, {self.nx*rpi}")
            A(f"s_add_u32 {s(T+1)}, {s(T+1)}, {j*rpi}")
            A(f"v_add_u32 {v(t2)}, {s(T+1)}, {v(t0)}")
            if self.BK == 64:
                A(f"v_bfe_u32 {v(t3)}, {v(t2)}, 1, 3")
            else:
                A(f"v_bfe_u32 {v(t3)}, {v(t2)}, 2, 2")
            A(f"v_xor_b32 {v(t3)}, {v(t3)}, {v(t1)}")
            A(f"v_lshlrev_b32 {v(t3)}, 4, {v(t3)}")
            A(f"s_mov_b32 {s(T+2)}, {self.ldx}")
            A(f"v_mul_lo_u32 {v(t2)}, {v(t2)}, {s(T+2)}")
            A(f"v_add_u32 {v(self.vLX+j)}, {v(t2)}, {v(t3)}")
            if j: A(f"v_subrev_u32 {v(self.vLX+j)}, {1024*j}, {v(self.vLX+j)}")
        cw = self.RB // 16
        per = self.WB // 4 // 16
        for j in range(self.nw):
            A(f"s_mul_i32 {s(T+1)}, {s(T)}, {per}")
            A(f"s_add_u32 {s(T+1)}, {s(T+1)}, {j*64}")
            A(f"v_add_u32 {v(t2)}, {s(T+1)}, v0")
            if cw & (cw - 1) == 0:
                A(f"v_lshrrev_b32 {v(t3)}, {cw.bit_length()-1}, {v(t2)}")
                A(f"v_and_b32 {v(t2)}, {cw-1}, {v(t2)}")
            else:
                magic = (65536 + cw - 1) // cw
                A(f"v_mul_u32_u24 {v(t3)}, {magic}, {v(t2)}")
                A(f"v_lshrrev_b32 {v(t3)}, 16, {v(t3)}")
                A(f"v_mul_u32_u24 {v(t1+4)}, {cw}, {v(t3)}")
                A(f"v_sub_u32 {v(t2)}, {v(t2)}, {v(t1+4)}")
            if self.wswz:
                A(f"v_and_b32 {v(t1+4)}, 3, {v(t3)}")
                A(f"v_lshlrev_b32 {v(t1+4)}, 2, {v(t1+4)}")
                A(f"v_xor_b32 {v(t2)}, {v(t2)}, {v(t1+4)}")
            A(f"v_lshlrev_b32 {v(t2)}, 4, {v(t2)}")
            A(f"s_mov_b32 {s(T+2)}, {self.ldw}")
            A(f"v_mul_lo_u32 {v(t3)}, {v(t3)}, {s(T+2)}")
            A(f"v_add_u32 {v(self.vLW+j)}, {v(t2)}, {v(t3)}")
            if j: A(f"v_subrev_u32 {v(self.vLW+j)}, {1024*j}, {v(self.vLW+j)}")
        A(f"s_mul_i32 {s(T+3)}, {s(T)}, {self.nx*1024}")
        A(f"s_mul_i32 {s(T+4)}, {s(T)}, {self.WB//4}")
        A(f"s_add_u32 {s(T+4)}, {s(T+4)}, {self.XB}")
        if self.w_tail:
            lo = (1 << self.w_tail) - 1
            A(f"s_mov_b32 {s(T+6)}, {lo & 0xffffffff}")
            A(f"s_mov_b32 {s(T+7)}, {lo >> 32}")
        def issue(st):
            if 'nodma' in ABL: return
            slot = (st % self.R) * self.SLOT
            A(f"s_add_u32 m0, {s(T+3)}, {slot}")
            A("s_nop 0")
            for j in range(self.nx):
                A(f"buffer_load_dwordx4 {v(self.vLX+j)}, {s(self.sXSRD,4)}, {s(self.sXOFF)} offen offset:{1024*j} lds")
            A(f"s_add_u32 m0, {s(T+4)}, {slot}")
            A(f"s_add_u32 {s(self.sXOFF)}, {s(self.sXOFF)}, {self.BK*2}")
            for j in range(self.nw):
                if self.w_tail and j == self.nw - 1: A(f"s_mov_b64 exec, {s(T+6,2)}")
                A(f"buffer_load_dwordx4 {v(self.vLW+j)}, {s(self.sWSRD,4)}, {s(self.sWOFF)} offen offset:{1024*j} lds")
                if self.w_tail and j == self.nw - 1: A(f"s_mov_b64 exec, -1")
            A(f"s_add_u32 {s(self.sWOFF)}, {s(self.sWOFF)}, {self.BK*self.ldw}")
        for st in range(min(self.R - 1, self.NS)): issue(st)
        for i in range(self.NS):
            issued = min(self.NS - 1, i + self.R - 2)
            need = min(i + 1, self.NS - 1)
            A(f"s_waitcnt vmcnt({self.n * (issued - need)})")
            A("s_barrier")
            if i + self.R - 1 <= self.NS - 1: issue(i + self.R - 1)
        if extra_end: extra_end(A)

    def compute_setup(self, A):
        T = self.sT
        rowb = self.BK * 2
        t0, t1, t2, t3, t4 = self.vT, self.vT+1, self.vT+2, self.vT+3, self.vT+4
        A(f"s_lshr_b32 {s(T)}, {s(self.sWAVE)}, {self.WN.bit_length()-1}")
        A(f"s_and_b32 {s(T+1)}, {s(self.sWAVE)}, {self.WN-1}")
        A(f"v_and_b32 {v(t0)}, 31, v0")
        A(f"v_lshrrev_b32 {v(t1)}, 5, v0")
        if self.BK == 64: A(f"v_bfe_u32 {v(t2)}, {v(t0)}, 1, 3")
        else: A(f"v_bfe_u32 {v(t2)}, {v(t0)}, 2, 2")
        A(f"v_xor_b32 {v(t2)}, {v(t2)}, {v(t1)}")
        A(f"v_lshlrev_b32 {v(t2)}, 4, {v(t2)}")
        A(f"s_mul_i32 {s(T+2)}, {s(T)}, {self.TM*32}")
        A(f"v_add_u32 {v(t0)}, {s(T+2)}, {v(t0)}")
        A(f"v_mul_u32_u24 {v(t0)}, {rowb}, {v(t0)}")
        A(f"v_add_u32 {v(t0)}, {v(t0)}, {v(t2)}")
        for sx in range(self.KS):
            A(f"v_xor_b32 {v(self.vXA+sx)}, {32*sx}, {v(t0)}")
        A(f"v_lshrrev_b32 {v(t0)}, 4, v0")
        A(f"v_and_b32 {v(t1)}, 15, v0")
        A(f"v_lshrrev_b32 {v(t2)}, 2, {v(t1)}")
        A(f"v_and_b32 {v(t1)}, 3, {v(t1)}")
        A(f"v_lshrrev_b32 {v(t3)}, 1, {v(t0)}")
        A(f"v_and_b32 {v(t0)}, 1, {v(t0)}")
        khs = 2 if self.kperm else 3
        A(f"v_lshlrev_b32 {v(t3)}, {khs}, {v(t3)}")
        A(f"v_add_u32 {v(t3)}, {v(t3)}, {v(t2)}")
        A(f"v_mul_u32_u24 {v(t3)}, {self.RB}, {v(t3)}")
        A(f"v_lshlrev_b32 {v(t0)}, 5, {v(t0)}")
        A(f"v_lshlrev_b32 {v(t1)}, 3, {v(t1)}")
        A(f"v_add3_u32 {v(t3)}, {v(t3)}, {v(t0)}, {v(t1)}")
        A(f"v_add_u32 {v(t3)}, {self.XB}, {v(t3)}")
        if self.wswz:
            A(f"v_lshlrev_b32 {v(t2)}, 6, {v(t2)}")
            A(f"v_add_u32 {v(t3)}, {v(t3)}, {v(t2)}")
            A(f"s_mul_i32 {s(T+2)}, {s(T+1)}, {self.TN*64}")
            for j in range(self.TN):
                A(f"s_add_u32 {s(T+3)}, {s(T+2)}, {64*j}")
                A(f"v_xor_b32 {v(self.vWA+j)}, {s(T+3)}, {v(t3)}")
        else:
            A(f"s_mul_i32 {s(T+2)}, {s(T+1)}, {self.TN*64}")
            A(f"v_add_u32 {v(self.vWA)}, {s(T+2)}, {v(t3)}")
        for h in range(self.nhi):
            for j in range(self.KS + self.nWA):
                A(f"v_add_u32 {v(self.vHI + h*(self.KS+self.nWA) + j)}, {65536*(h+1)}, {v(self.vXA + j)}")

    def reads(self, A, st, sx, buf):
        if 'noread' in ABL: return 0
        slot = (st % self.R) * self.SLOT
        rowb = self.BK * 2
        n = 0
        for tb in range(self.TM):
            b, imm = self.xaddr(slot + tb * 32 * rowb, sx)
            A(f"ds_read_b128 {v(self.vXF + (buf*self.TM + tb)*4, 4)}, {v(b)} offset:{imm}"); n += 1
        for j in range(self.TN):
            for hf in range(2):
                rowoff = sx * 16 + (8 if self.kperm else 4) * hf
                off = slot + rowoff * self.RB + (0 if self.wswz else 64 * j)
                b, imm = self.waddr(off, j)
                A(f"ds_read_b64_tr_b16 {v(self.vWF + (buf*self.TN + j)*4 + 2*hf, 2)}, {v(b)} offset:{imm}"); n += 1
        return n

    def compute(self, A, orient, acc_init=None):
        nreads = self.TM + 2 * self.TN
        first = [[True] * self.TN for _ in range(self.TM)]
        A("s_barrier")
        self.reads(A, 0, 0, 0)
        step = 0
        for st in range(self.NS):
            for sx in range(self.KS):
                buf = step & 1
                last = (st == self.NS - 1 and sx == self.KS - 1)
                if not last:
                    nst, nsx = (st, sx + 1) if sx + 1 < self.KS else (st + 1, 0)
                    self.reads(A, nst, nsx, buf ^ 1)
                    A(f"s_waitcnt lgkmcnt({nreads})")
                else:
                    A("s_waitcnt lgkmcnt(0)")
                for tb in range(self.TM if 'nomfma' not in ABL or step == 0 else 0):
                    js = range(self.TN) if tb % 2 == 0 else range(self.TN - 1, -1, -1)
                    for j in js:
                        acc = self.vACC + (tb * self.TN + j) * 16
                        xf = self.vXF + (buf * self.TM + tb) * 4
                        wf = self.vWF + (buf * self.TN + j) * 4
                        c = "0" if (step == 0 and acc_init is None) else v(acc, 16)
                        A(mfma(acc, wf, xf, c) if orient == 'T' else mfma(acc, xf, wf, c))
                if sx == self.KS - 1 and st < self.NS - 1:
                    A("s_barrier")
                step += 1

class G2:
    sXSRD, sWSRD, sOSRD = 8, 12, 16
    sWAVE, sXOFF, sWOFF, sLDS = 20, 21, 22, 23
    sT = 24
    def __init__(self, pfx, BN, BK, R, NS, ldw, kperm, mode, PD=4, vbase=2, lds_base=0):
        self.pfx, self.BN, self.BK, self.R, self.NS, self.ldw = pfx, BN, BK, R, NS, ldw
        self.kperm, self.mode, self.PD, self.lds_base = kperm, mode, PD, lds_base
        self.TN = BN // 32
        self.KS = BK // 16
        self.WB = BK * BN * 2
        self.SLOT = self.WB
        self.RB = BN * 2
        m = self.RB % 256
        self.swz = 'none' if m in (64, 192) else ('x4' if m == 0 else 'x2')
        wbytes = self.WB // 4
        self.nw_full = wbytes // 1024
        self.w_tail = (wbytes % 1024) // 16
        self.nw = self.nw_full + (1 if self.w_tail else 0)
        self.n = self.nw
        assert self.nw <= 4 or True
        r = vbase
        self.vL16 = r; r += 1
        self.nWA = self.TN if self.swz != 'none' else 1
        self.vWA = r; r += self.nWA
        self.nhi = (lds_base + self.R * self.SLOT + 65535) // 65536 - 1
        self.vHI = r; r += self.nhi * self.nWA
        r = (r + 1) // 2 * 2
        self.vXF = r; r += PD * 4
        self.nbuf = 1 if mode == 'roll' else 2
        self.vWF = r; r += self.nbuf * self.TN * 4
        self.vACC = r; r += self.TN * 16
        self.vT = r
        self.vLW = 2

    def waddr(self, off, j):
        h = off >> 16
        jj = j if self.swz != 'none' else 0
        base = self.vWA + jj if h == 0 else self.vHI + (h - 1) * self.nWA + jj
        return base, off & 0xffff

    def loader(self, A):
        T = self.sT
        A.c("---- W loader wave")
        A(f"s_sub_u32 {s(T)}, {s(self.sWAVE)}, 4")
        t2, t3, t4 = 20, 21, 22
        cw = self.RB // 16
        per = self.WB // 4 // 16
        for j in range(self.nw):
            A(f"s_mul_i32 {s(T+1)}, {s(T)}, {per}")
            A(f"s_add_u32 {s(T+1)}, {s(T+1)}, {j*64}")
            A(f"v_add_u32 {v(t2)}, {s(T+1)}, v0")
            if cw & (cw - 1) == 0:
                A(f"v_lshrrev_b32 {v(t3)}, {cw.bit_length()-1}, {v(t2)}")
                A(f"v_and_b32 {v(t2)}, {cw-1}, {v(t2)}")
            else:
                magic = (65536 + cw - 1) // cw
                A(f"v_mul_u32_u24 {v(t3)}, {magic}, {v(t2)}")
                A(f"v_lshrrev_b32 {v(t3)}, 16, {v(t3)}")
                A(f"v_mul_u32_u24 {v(t4)}, {cw}, {v(t3)}")
                A(f"v_sub_u32 {v(t2)}, {v(t2)}, {v(t4)}")
            if self.swz == 'x4':
                A(f"v_and_b32 {v(t4)}, 3, {v(t3)}")
                A(f"v_lshlrev_b32 {v(t4)}, 2, {v(t4)}")
                A(f"v_xor_b32 {v(t2)}, {v(t2)}, {v(t4)}")
            elif self.swz == 'x2':
                A(f"v_bfe_u32 {v(t4)}, {v(t3)}, 1, 1")
                A(f"v_lshlrev_b32 {v(t4)}, 2, {v(t4)}")
                A(f"v_xor_b32 {v(t2)}, {v(t2)}, {v(t4)}")
            A(f"v_lshlrev_b32 {v(t2)}, 4, {v(t2)}")
            A(f"s_mov_b32 {s(T+2)}, {self.ldw}")
            A(f"v_mul_lo_u32 {v(t3)}, {v(t3)}, {s(T+2)}")
            A(f"v_add_u32 {v(self.vLW+j)}, {v(t2)}, {v(t3)}")
            if j % 4: A(f"v_subrev_u32 {v(self.vLW+j)}, {1024*(j%4)}, {v(self.vLW+j)}")
        A(f"s_mul_i32 {s(T+4)}, {s(T)}, {self.WB//4}")
        if self.lds_base: A(f"s_add_u32 {s(T+4)}, {s(T+4)}, {self.lds_base}")
        if self.w_tail:
            lo = (1 << self.w_tail) - 1
            A(f"s_mov_b32 {s(T+6)}, {lo & 0xffffffff}")
            A(f"s_mov_b32 {s(T+7)}, {lo >> 32}")
        def issue(st):
            slot = (st % self.R) * self.SLOT
            for j in range(self.nw):
                if j % 4 == 0:
                    A(f"s_add_u32 m0, {s(T+4)}, {slot + 1024*j}")
                    A("s_nop 0")
                if self.w_tail and j == self.nw - 1: A(f"s_mov_b64 exec, {s(T+6,2)}")
                A(f"buffer_load_dwordx4 {v(self.vLW+j)}, {s(self.sWSRD,4)}, {s(self.sWOFF)} offen offset:{1024*(j%4)} lds")
                if self.w_tail and j == self.nw - 1: A(f"s_mov_b64 exec, -1")
            A(f"s_add_u32 {s(self.sWOFF)}, {s(self.sWOFF)}, {self.BK*self.ldw}")
        for st in range(min(self.R - 1, self.NS)): issue(st)
        for i in range(self.NS):
            issued = min(self.NS - 1, i + self.R - 2)
            need = min(i + 1, self.NS - 1)
            A(f"s_waitcnt vmcnt({self.n * (issued - need)})")
            A("s_barrier")
            if i + self.R - 1 <= self.NS - 1: issue(i + self.R - 1)

    def compute_setup(self, A):
        T = self.sT
        t0, t1, t2, t3 = self.vT, self.vT+1, self.vT+2, self.vT+3
        A(f"v_lshlrev_b32 {v(self.vL16)}, 4, v0")
        A(f"v_lshrrev_b32 {v(t0)}, 4, v0")
        A(f"v_and_b32 {v(t1)}, 15, v0")
        A(f"v_lshrrev_b32 {v(t2)}, 2, {v(t1)}")
        A(f"v_and_b32 {v(t1)}, 3, {v(t1)}")
        A(f"v_lshrrev_b32 {v(t3)}, 1, {v(t0)}")
        A(f"v_and_b32 {v(t0)}, 1, {v(t0)}")
        khs = 2 if self.kperm else 3
        A(f"v_lshlrev_b32 {v(t3)}, {khs}, {v(t3)}")
        A(f"v_add_u32 {v(t3)}, {v(t3)}, {v(t2)}")
        A(f"v_mul_u32_u24 {v(t3)}, {self.RB}, {v(t3)}")
        A(f"v_lshlrev_b32 {v(t0)}, 5, {v(t0)}")
        A(f"v_lshlrev_b32 {v(t1)}, 3, {v(t1)}")
        A(f"v_add3_u32 {v(t3)}, {v(t3)}, {v(t0)}, {v(t1)}")
        if self.lds_base: A(f"v_add_u32 {v(t3)}, {self.lds_base}, {v(t3)}")
        if self.swz == 'x4':
            A(f"v_lshlrev_b32 {v(t2)}, 6, {v(t2)}")
            A(f"v_add_u32 {v(t3)}, {v(t3)}, {v(t2)}")
            for j in range(self.TN): A(f"v_xor_b32 {v(self.vWA+j)}, {64*j}, {v(t3)}")
        elif self.swz == 'x2':
            A(f"v_bfe_u32 {v(t2)}, {v(t2)}, 1, 1")
            A(f"v_lshlrev_b32 {v(t2)}, 6, {v(t2)}")
            A(f"v_add_u32 {v(t3)}, {v(t3)}, {v(t2)}")
            for j in range(self.TN): A(f"v_xor_b32 {v(self.vWA+j)}, {64*j}, {v(t3)}")
        else:
            A(f"v_mov_b32 {v(self.vWA)}, {v(t3)}")
        for h in range(self.nhi):
            for j in range(self.nWA):
                A(f"v_add_u32 {v(self.vHI + h*self.nWA + j)}, {65536*(h+1)}, {v(self.vWA + j)}")

    def wread(self, A, step, j, buf):
        st, sx = divmod(step, self.KS)
        slot = (st % self.R) * self.SLOT
        for hf in range(2):
            rowoff = sx * 16 + (8 if self.kperm else 4) * hf
            off = slot + rowoff * self.RB + (0 if self.swz != 'none' else 64 * j)
            if self.lds_base and False: off += self.lds_base
            b, imm = self.waddr(off + (self.lds_base if False else 0), j)
            A(f"ds_read_b64_tr_b16 {v(self.vWF + (buf*self.TN + j)*4 + 2*hf, 2)}, {v(b)} offset:{imm}")

    def xload(self, A, step):
        r = self.vXF + (step % self.PD) * 4
        q, rem = divmod(step, 4)
        A(f"buffer_load_dwordx4 {v(r,4)}, {v(self.vL16)}, {s(self.sXSRD,4)}, {s(self.sXOFF)} offen offset:{rem*1024}")
        if rem == 3: A(f"s_add_u32 {s(self.sXOFF)}, {s(self.sXOFF)}, 4096")

    def prefetch_x(self, A):
        for st in range(min(self.PD, self.NS * self.KS)): self.xload(A, st)

    def compute(self, A, orient='T', xpre=True):
        NSTEP = self.NS * self.KS
        if not xpre: self.prefetch_x(A)
        A("s_barrier")
        for j in range(self.TN): self.wread(A, 0, j, 0)
        for step in range(NSTEP):
            st, sx = divmod(step, self.KS)
            last = step == NSTEP - 1
            rem_x = min(NSTEP - 1, step + self.PD - 1) - step
            A(f"s_waitcnt vmcnt({rem_x})")
            xf = self.vXF + (step % self.PD) * 4
            if self.mode == 'dbl':
                buf = step & 1
                if not last:
                    for j in range(self.TN): self.wread(A, step + 1, j, buf ^ 1)
                    A(f"s_waitcnt lgkmcnt({2*self.TN})")
                else:
                    A("s_waitcnt lgkmcnt(0)")
                for j in range(self.TN):
                    acc = self.vACC + j * 16; wf = self.vWF + (buf * self.TN + j) * 4
                    c = "0" if step == 0 else v(acc, 16)
                    A(mfma(acc, wf, xf, c) if orient == 'T' else mfma(acc, xf, wf, c))
            else:
                for j in range(self.TN):
                    if not last: A(f"s_waitcnt lgkmcnt({2*(self.TN-1)})")
                    else: A(f"s_waitcnt lgkmcnt({2*(self.TN-1-j)})")
                    acc = self.vACC + j * 16; wf = self.vWF + j * 4
                    c = "0" if step == 0 else v(acc, 16)
                    A(mfma(acc, wf, xf, c) if orient == 'T' else mfma(acc, xf, wf, c))
                    if not last: self.wread(A, step + 1, j, 0)
            if step + self.PD < NSTEP: self.xload(A, step + self.PD)
            if sx == self.KS - 1 and st < self.NS - 1:
                if self.mode == 'roll': pass
                A("s_barrier")
```

```python
from asmlib import *
from layout import *
from gemm import G1, mfma
import struct
def f32bits(x): return struct.unpack("<I", struct.pack("<f", x))[0]

def make_srd(A, sreg, ptr_s, size):
    A(f"s_mov_b32 {s(sreg)}, {s(ptr_s)}")
    A(f"s_and_b32 {s(sreg+1)}, {s(ptr_s+1)}, 0xffff")
    A(f"s_mov_b32 {s(sreg+2)}, {size}")
    A(f"s_mov_b32 {s(sreg+3)}, 0x20000")

def gen_gate(A, sRow0, sXSRD, sOSRD, sWAVE, sT):
    A.c("---- gate")
    A(f"s_load_dwordx2 {s(sT,2)}, s[0:1], {KARG['gate_w']}")
    A(f"v_lshrrev_b32 v2, 2, v0")
    A(f"v_and_b32 v3, 3, v0")
    A(f"s_lshl_b32 {s(sT+2)}, {s(sWAVE)}, 4")
    A(f"s_add_u32 {s(sT+2)}, {s(sT+2)}, {s(sRow0)}")
    A(f"v_add_u32 v2, {s(sT+2)}, v2")
    A(f"v_mul_u32_u24 v4, 1280, v2")
    A(f"v_mul_u32_u24 v5, 320, v3")
    A(f"v_add_u32 v4, v4, v5")
    A("s_waitcnt lgkmcnt(0)")
    make_srd(A, sT+4, sT, 1280)
    for i in range(10):
        for hf in range(2):
            k = 2*i+hf
            A(f"buffer_load_dwordx4 v[{8+4*k}:{11+4*k}], v4, {s(sXSRD,4)}, 0 offen offset:{16*k}")
    done = 0
    A("v_mov_b32 v6, 0")
    A("v_mov_b32 v7, 0")
    for b in range(2):
        for i in range(10):
            k = 10*b + i
            A(f"buffer_load_dwordx4 v[{88+4*i}:{91+4*i}], v5, {s(sT+4,4)}, 0 offen offset:{16*k}")
        A("s_waitcnt vmcnt(0)")
        for i in range(10):
            k = 10*b + i
            for j in range(4):
                A(f"v_dot2_f32_bf16 v{6+(j&1)}, v{8+4*k+j}, v{88+4*i+j}, v{6+(j&1)}")
        A("s_nop 3")
    A("v_add_f32 v6, v6, v7")
    A("s_nop 1")
    A("v_add_f32_dpp v6, v6, v6 quad_perm:[1,0,3,2] row_mask:0xf bank_mask:0xf")
    A("s_nop 1")
    A("v_add_f32_dpp v6, v6, v6 quad_perm:[2,3,0,1] row_mask:0xf bank_mask:0xf")
    A("v_cvt_pk_bf16_f32 v6, v6, v6")
    A("v_lshlrev_b32 v6, 16, v6")
    A(f"v_mul_f32 v6, 0xbfb8aa3b, v6")
    A("v_exp_f32 v6, v6")
    A("s_nop 0")
    A("v_add_f32 v6, 1.0, v6")
    A("v_rcp_f32 v6, v6")
    A("s_nop 0")
    A("v_cvt_pk_bf16_f32 v6, v6, v6")
    A("v_lshlrev_b32 v6, 16, v6")
    A(f"v_lshlrev_b32 v2, 2, v2")
    A(f"v_add_u32 v2, {GATE}, v2")
    A("v_cmp_eq_u32 vcc, 0, v3")
    A("s_and_saveexec_b64 s[40:41], vcc")
    A(f"buffer_store_dword v6, v2, {s(sOSRD,4)}, 0 offen")
    A("s_endpgm")

def gen_k1(A, stamp=None, P="k1"):
    g = G1(P, BN=128, BK=64, R=4, NS=10, ldx=1280, ldw=3840, WM=2, WN=2)
    T = g.sT
    sCT, sRB, sWM, sWN = 40, 41, 42, 43
    A("s_cmp_ge_u32 s2, 256")
    A(f"s_cbranch_scc1 {P}_exit")
    if stamp: stamp.start(A)
    A(f"s_load_dwordx2 s[4:5], s[0:1], {KARG['A_x']}")
    A(f"s_load_dwordx2 s[6:7], s[0:1], {KARG['A_wqkv']}")
    A(f"s_load_dwordx2 s[44:45], s[0:1], {KARG['ws']}")
    A("v_lshrrev_b32 v1, 6, v0")
    A("v_and_b32 v0, 63, v0")
    A(f"v_readfirstlane_b32 {s(g.sWAVE)}, v1")
    A(f"s_and_b32 {s(T)}, s2, 7")
    A(f"s_lshr_b32 {s(T+1)}, s2, 3")
    A(f"s_and_b32 {s(T+2)}, {s(T)}, 3")
    A(f"s_lshl_b32 {s(T+2)}, {s(T+2)}, 2")
    A(f"s_and_b32 {s(T+3)}, {s(T+1)}, 3")
    A(f"s_add_u32 {s(sRB)}, {s(T+2)}, {s(T+3)}")
    A(f"s_lshr_b32 {s(T+2)}, {s(T)}, 2")
    A(f"s_lshl_b32 {s(T+2)}, {s(T+2)}, 3")
    A(f"s_lshr_b32 {s(T+3)}, {s(T+1)}, 2")
    A(f"s_add_u32 {s(sCT)}, {s(T+2)}, {s(T+3)}")
    A("s_waitcnt lgkmcnt(0)")
    make_srd(A, g.sXSRD, 4, S*D*2)
    make_srd(A, g.sWSRD, 6, D*3*D*2)
    make_srd(A, g.sOSRD, 44, WS_USED)
    A(f"s_cmp_eq_u32 {s(sCT)}, 15")
    A(f"s_cbranch_scc1 {P}_gate")
    A(f"s_mul_i32 {s(g.sXOFF)}, {s(sRB)}, {128*1280}")
    A(f"s_lshl_b32 {s(g.sWOFF)}, {s(sCT)}, 8")
    A(f"s_cmp_ge_u32 {s(g.sWAVE)}, 4")
    A(f"s_cbranch_scc1 {P}_loader")
    g.compute_setup(A)
    A(f"s_lshr_b32 {s(sWM)}, {s(g.sWAVE)}, 1")
    A(f"s_and_b32 {s(sWN)}, {s(g.sWAVE)}, 1")
    A(f"s_cmp_ge_u32 {s(sCT)}, 10")
    A(f"s_cbranch_scc1 {P}_v")
    g.compute(A, 'T')
    if stamp: stamp.mid(A, 0)
    t = g.vT
    A(f"s_cmp_ge_u32 {s(sCT)}, 5")
    A(f"s_cselect_b32 {s(T)}, 5, 0")
    A(f"s_cselect_b32 {s(T+1)}, {KF-QF}, 0")
    A(f"s_cselect_b32 {s(T+6)}, 1.0, {f32bits(CSCALE)}")
    A(f"s_sub_u32 {s(T)}, {s(sCT)}, {s(T)}")
    A(f"s_lshl_b32 {s(T)}, {s(T)}, 5")
    A(f"s_lshl_b32 {s(T+2)}, {s(sWN)}, 4")
    A(f"s_add_u32 {s(T)}, {s(T)}, {s(T+2)}")
    A(f"s_lshl_b32 {s(T+2)}, {s(sRB)}, 2")
    A(f"s_lshl_b32 {s(T+3)}, {s(sWM)}, 1")
    A(f"s_add_u32 {s(T+2)}, {s(T+2)}, {s(T+3)}")
    A(f"s_mul_i32 {s(T+2)}, {s(T+2)}, 1280")
    A(f"s_add_u32 {s(T+1)}, {s(T+1)}, {s(T+2)}")
    if QF: A(f"s_add_u32 {s(T+1)}, {s(T+1)}, {QF}")
    A(f"v_and_b32 {v(t)}, 31, v0")
    A(f"v_lshrrev_b32 {v(t+1)}, 5, v0")
    A(f"v_lshlrev_b32 {v(t+2)}, 4, {v(t)}")
    A(f"v_lshlrev_b32 {v(t+3)}, 3, {v(t)}")
    A(f"v_add_u32 {v(t+3)}, 1024, {v(t+3)}")
    A(f"v_add_u32 {v(t+1)}, {s(T)}, {v(t+1)}")
    A("s_nop 7")
    for j in range(2):
        for gg in range(4):
            a0 = t + 4
            A(f"v_add_u32 {v(a0)}, {j*8+2*gg}, {v(t+1)}")
            A(f"v_mul_u32_u24 {v(a0+1)}, 52429, {v(a0)}")
            A(f"v_lshrrev_b32 {v(a0+1)}, 18, {v(a0+1)}")
            A(f"v_mul_u32_u24 {v(a0+2)}, 5, {v(a0+1)}")
            A(f"v_sub_u32 {v(a0)}, {v(a0)}, {v(a0+2)}")
            A(f"v_lshrrev_b32 {v(a0+2)}, 1, {v(a0)}")
            A(f"v_lshlrev_b32 {v(a0+2)}, 9, {v(a0+2)}")
            A(f"v_and_b32 {v(a0+3)}, 1, {v(a0)}")
            A(f"v_lshl_add_u32 {v(a0+2)}, {v(a0+3)}, 3, {v(a0+2)}")
            A(f"v_add_u32 {v(a0+2)}, {v(a0+2)}, {v(t+2)}")
            A(f"v_cmp_eq_u32 vcc, 4, {v(a0)}")
            A(f"v_mul_u32_u24 {v(a0+1)}, {HEADB}, {v(a0+1)}")
            A("s_nop 0")
            A(f"v_cndmask_b32 {v(a0+2)}, {v(a0+2)}, {v(t+3)}, vcc")
            A(f"v_add_u32 {v(a0+2)}, {v(a0+2)}, {v(a0+1)}")
            for tb in range(2):
                acc = g.vACC + (tb*2 + j)*16 + 4*gg
                d0 = t + 8 + 2*tb
                for i in range(4): A(f"v_mul_f32 {v(acc+i)}, {s(T+6)}, {v(acc+i)}")
                A(f"v_cvt_pk_bf16_f32 {v(d0)}, {v(acc)}, {v(acc+1)}")
                A(f"v_cvt_pk_bf16_f32 {v(d0+1)}, {v(acc+2)}, {v(acc+3)}")
                A(f"buffer_store_dwordx2 {v(d0,2)}, {v(a0+2)}, {s(g.sOSRD,4)}, {s(T+1)} offen offset:{1280*tb}")
            A("s_nop 0")
    if stamp: stamp.end(A, g.sWAVE, g.sOSRD, t+16)
    A("s_endpgm")
    A.label(f"{P}_v")
    g.compute(A, 'N')
    if stamp: stamp.mid(A, 0)
    A(f"s_sub_u32 {s(T)}, {s(sCT)}, 10")
    A(f"s_lshl_b32 {s(T)}, {s(T)}, 7")
    A(f"s_lshl_b32 {s(T+2)}, {s(sWN)}, 6")
    A(f"s_add_u32 {s(T)}, {s(T)}, {s(T+2)}")
    A(f"s_lshl_b32 {s(T+2)}, {s(sRB)}, 2")
    A(f"s_lshl_b32 {s(T+3)}, {s(sWM)}, 1")
    A(f"s_add_u32 {s(T+2)}, {s(T+2)}, {s(T+3)}")
    A(f"s_mul_i32 {s(T+2)}, {s(T+2)}, 1280")
    A(f"s_add_u32 {s(T+1)}, {s(T+2)}, {VF}")
    A(f"v_and_b32 {v(t)}, 31, v0")
    A(f"v_lshrrev_b32 {v(t+1)}, 5, v0")
    A(f"v_mul_u32_u24 {v(t+1)}, 320, {v(t+1)}")
    A(f"v_add_u32 {v(t)}, {s(T)}, {v(t)}")
    A("s_nop 7")
    for j in range(2):
        a0 = t + 4
        A(f"v_add_u32 {v(a0)}, {32*j}, {v(t)}")
        A(f"v_mul_u32_u24 {v(a0+1)}, 52429, {v(a0)}")
        A(f"v_lshrrev_b32 {v(a0+1)}, 20, {v(a0+1)}")
        A(f"v_mul_u32_u24 {v(a0+2)}, 20, {v(a0+1)}")
        A(f"v_sub_u32 {v(a0)}, {v(a0)}, {v(a0+2)}")
        A(f"v_mul_u32_u24 {v(a0+1)}, {HEADB}, {v(a0+1)}")
        A(f"v_lshl_add_u32 {v(a0+2)}, {v(a0)}, 4, {v(a0+1)}")
        A(f"v_add_u32 {v(a0+2)}, {v(a0+2)}, {v(t+1)}")
        for tb in range(2):
            for m in range(2):
                acc = g.vACC + (tb*2 + j)*16 + 8*m
                d0 = t + 8 + 4*((tb*2+m) & 1)
                for i in range(4): A(f"v_cvt_pk_bf16_f32 {v(d0+i)}, {v(acc+2*i)}, {v(acc+2*i+1)}")
                A(f"buffer_store_dwordx4 {v(d0,4)}, {v(a0+2)}, {s(g.sOSRD,4)}, {s(T+1)} offen offset:{1280*tb+640*m}")
                A("s_nop 1")
    if stamp: stamp.end(A, g.sWAVE, g.sOSRD, t+16)
    A("s_endpgm")
    A.label(f"{P}_loader")
    g.loader(A)
    A("s_endpgm")
    A.label(f"{P}_gate")
    A(f"s_lshl_b32 {s(44+2)}, {s(sRB)}, 7")
    gen_gate(A, 46, g.sXSRD, g.sOSRD, g.sWAVE, T)
    A.label(f"{P}_exit")
    A("s_endpgm")
    return g
```

```python
S, D, H, DH, F = 2048, 640, 32, 20, 1536
HEADB = 64 * 1280
QF = 0x000000
KF = 0x280000
VF = 0x500000
OF = 0x780000
HF = 0xA00000
GATE = 0x1000000
BP = 0x1010000
WS_USED = 0x3000000
KARG = dict(A_x=0, A_wqkv=8, A_wo=16, B_x=24, B_w1=32, B_b1=40, B_w2=48, B_b2=56, gate_w=64, out=72, dbg=80, ws=88)
CSCALE = (20 ** -0.5) * 1.4426950408889634
```

```python
from asmlib import *
STAMP = 0x2000000
class Stamp:
    def __init__(self, slot): self.slot = slot
    def start(self, A):
        A("s_memtime s[60:61]"); A("s_memrealtime s[62:63]")
    def mid(self, A, i):
        A(f"s_memtime s[{64+2*i}:{65+2*i}]")
    def end(self, A, wave_sreg, srd, vt):
        A("s_mov_b64 exec, -1")
        A("s_memtime s[72:73]"); A("s_memrealtime s[74:75]")
        A("s_waitcnt lgkmcnt(0)")
        A("s_sub_u32 s72, s72, s60")
        for i in range(3): A(f"s_sub_u32 s{64+2*i}, s{64+2*i}, s60")
        A("s_lshl_b32 s76, s2, 4")
        A(f"s_add_u32 s76, s76, s{wave_sreg}")
        A("s_lshl_b32 s76, s76, 5")
        A(f"s_add_u32 s76, s76, {STAMP + self.slot * 0x80000}")
        for i, r in enumerate([72, 62, 74, 64, 66, 68]): A(f"v_mov_b32 v{vt+i}, s{r}")
        A(f"v_mov_b32 v{vt+6}, 0")
        A(f"buffer_store_dwordx4 v[{vt}:{vt+3}], v{vt+6}, {s(srd,4)}, s76 offen")
        A(f"buffer_store_dwordx2 v[{vt+4}:{vt+5}], v{vt+6}, {s(srd,4)}, s76 offen offset:16")
```

```python
from asmlib import *
from layout import *

vLANE16, vKA, vK8A, vVA, vK8B, vVB = 2, 3, 4, 5, 6, 7
QA16, QB16, QA8, QB8 = 8, 12, 16, 18
KB = [(20, 24), (26, 30)]
VB = [(32, 36), (40, 44)]
P = 48
OA, OB = 56, 72
SA, SBb = 88, 104
vT = 120
SLOT = 20480
NSLOT = 4

sWS = 4
sSRD = 8
sWAVE, sHEAD, sQT = 12, 13, 14
sGOFF, sLOFF, sCH = 15, 16, 17
sKSLOT, sVSLOT = 18, 19
sMV = 20
sML = 22
sT = 24
sGRP = 34
STAMP = 0x2000000 + 4*0x80000
ABL = set()
PRIO = None
PUBLISH = False
sDBG = 36
ROT = True
LOOPPRIO = None
sKI = 35

def stamp_start(A):
    A("s_memtime s[40:41]")
    A("s_memrealtime s[42:43]")
def stamp_mid(A, r):
    A(f"s_memtime s[{r}:{r+1}]")
def stamp_end(A, wave_sreg, srd, vt):
    A("s_mov_b64 exec, -1")
    A("s_memtime s[44:45]")
    A("s_memrealtime s[46:47]")
    A("s_waitcnt lgkmcnt(0)")
    A("s_sub_u32 s44, s44, s40")
    A("s_sub_u32 s48, s48, s40")
    A("s_sub_u32 s50, s50, s40")
    A("s_lshl_b32 s52, s2, 4")
    A(f"s_add_u32 s52, s52, s{wave_sreg}")
    A("s_lshl_b32 s52, s52, 5")
    A(f"s_add_u32 s52, s52, {STAMP}")
    A(f"v_mov_b32 v{vt}, s44"); A(f"v_mov_b32 v{vt+1}, s42"); A(f"v_mov_b32 v{vt+2}, s46"); A(f"v_mov_b32 v{vt+3}, s48")
    A(f"v_mov_b32 v{vt+4}, s50"); A(f"v_mov_b32 v{vt+5}, 0")
    A(f"v_mov_b32 v{vt+6}, 0")
    A(f"buffer_store_dwordx4 v[{vt}:{vt+3}], v{vt+6}, {s(srd,4)}, s52 offen")
    A(f"buffer_store_dwordx2 v[{vt+4}:{vt+5}], v{vt+6}, {s(srd,4)}, s52 offen offset:16")

def dma_piece(A, i):
    if i == 0:
        A(f"s_mov_b32 m0, {s(sLOFF)}")
        A("s_nop 0")
    if i == 2: A(f"s_mov_b64 exec, {s(sML,2)}")
    A(f"buffer_load_dwordx4 {v(vLANE16)}, {s(sSRD,4)}, {s(sGOFF)} offen offset:{1024*i} lds")
    if i == 2:
        A(f"s_mov_b64 exec, -1")
        A(f"s_add_u32 {s(sGOFF)}, {s(sGOFF)}, 5120")
        if ROT:
            A(f"s_add_u32 {s(sKI)}, {s(sKI)}, 1")
            A(f"s_cmp_eq_u32 {s(sKI)}, 8")
            A(f"s_cselect_b32 {s(sKI)}, 0, {s(sKI)}")
            A(f"s_cselect_b32 {s(sT)}, 40960, 0")
            A(f"s_sub_u32 {s(sGOFF)}, {s(sGOFF)}, {s(sT)}")
        A(f"s_add_u32 {s(sLOFF)}, {s(sLOFF)}, {SLOT}")
        A(f"s_cmp_ge_u32 {s(sLOFF)}, {NSLOT*SLOT}")
        A(f"s_cselect_b32 {s(sT)}, {NSLOT*SLOT}, 0")
        A(f"s_sub_u32 {s(sLOFF)}, {s(sLOFF)}, {s(sT)}")

def next_slot(A, sreg, grpoff):
    A(f"s_add_u32 {s(sreg)}, {s(sreg)}, {SLOT}")
    A(f"s_cmp_ge_u32 {s(sreg)}, {NSLOT*SLOT}")
    A(f"s_cselect_b32 {s(sreg)}, 0, {s(sreg)}")

def read_K(A, tl, buf):
    if 'noread' in ABL: return
    k16, k8 = KB[buf]
    A(f"ds_read_b128 {v(k16,4)}, {v(vKA)} offset:{tl*1280}")
    A(f"ds_read_b64 {v(k8,2)}, {v(vK8A)} offset:{tl*1280}")
def read_V(A, tl, buf):
    if 'noread' in ABL: return
    v0, v1 = VB[buf]
    A(f"s_mov_b64 exec, {s(sMV,2)}")
    A(f"ds_read_b128 {v(v0,4)}, {v(vVA)} offset:{tl*1280}")
    A(f"ds_read_b128 {v(v1,4)}, {v(vVA)} offset:{tl*1280+640}")
    A(f"s_mov_b64 exec, -1")

def E(A, sb, i): A(f"v_exp_f32 {v(sb+i)}, {v(sb+i)}")
def C(A, sb, i): A(f"v_cvt_pk_bf16_f32 {v(P+i)}, {v(sb+2*i)}, {v(sb+2*i+1)}")
def S16(A, d, k, q): A(f"v_mfma_f32_32x32x16_bf16 {v(d,16)}, {v(k,4)}, {v(q,4)}, 0")
def S8(A, d, k, q): A(f"v_mfma_f32_32x32x8_bf16 {v(d,16)}, {v(k,2)}, {v(q,2)}, {v(d,16)}")
def PV(A, o, vv, p): A(f"v_mfma_f32_32x32x16_bf16 {v(o,16)}, {v(vv,4)}, {v(p,4)}, {v(o,16)}")

def barrier_site(A, pfx):
    if 'nobar' in ABL: return
    A(f"s_cmp_ge_u32 {s(sCH)}, 6")
    A(f"s_cbranch_scc1 {pfx}_w0")
    A("s_waitcnt vmcnt(3)")
    A(f"s_branch {pfx}_w1")
    A.label(f"{pfx}_w0")
    A("s_waitcnt vmcnt(0)")
    A.label(f"{pfx}_w1")
    A("s_barrier")

def dma_site(A, i, pfx):
    if 'nodma' in ABL: return
    A(f"s_cmp_ge_u32 {s(sCH)}, 5")
    A(f"s_cbranch_scc1 {pfx}_nd{i}")
    dma_piece(A, i)
    A.label(f"{pfx}_nd{i}")

def half(A, cur, oth, qo16, qo8, kbuf, o_cur, o_prev, v_cur, v_prev, hooks):
    if PRIO is not None: A(f"s_setprio {PRIO[0] if cur == SA else PRIO[1]}")
    hooks('top')
    E(A, cur, 0); E(A, cur, 1)
    PV(A, o_prev, VB[v_prev][1], P+4)
    hooks('afterdef')
    for i in range(2, 6): E(A, cur, i)
    S16(A, oth, KB[kbuf][0], qo16)
    E(A, cur, 6); E(A, cur, 7)
    for i in range(4): C(A, cur, i)
    S8(A, oth, KB[kbuf][1], qo8)
    hooks('afterS8')
    for i in range(8, 12): E(A, cur, i)
    PV(A, o_cur, VB[v_cur][0], P)
    hooks('afterPV0')
    for i in range(12, 16): E(A, cur, i)
    for i in range(4, 8): C(A, cur, i)

def unit(A, tl, grp, pfx):
    b = tl & 1
    def hooksA(where):
        if where == 'top':
            A("s_waitcnt lgkmcnt(0)")
            if grp == 0 and tl == 2: barrier_site(A, pfx)
        if where == 'afterdef':
            if tl == 3:
                next_slot(A, sVSLOT, 0)
                A(f"v_add_u32 {v(vVA)}, {s(sVSLOT)}, {v(vVB)}")
            read_V(A, (tl + 1) & 3, b ^ 1)
        if where == 'afterS8':
            if tl == 2:
                next_slot(A, sKSLOT, 0)
                A(f"v_add_u32 {v(vKA)}, {s(sKSLOT)}, {v(vLANE16+0) if False else v(vT)}")
                A(f"v_add_u32 {v(vK8A)}, {s(sKSLOT)}, {v(vK8B)}")
            read_K(A, (tl + 2) & 3, b)
        if where == 'afterPV0':
            if grp == 0 and tl == 2: dma_site(A, 0, pfx)
            if grp == 0 and tl == 3: dma_site(A, 2, pfx)
            if grp == 1 and tl == 2: dma_site(A, 1, pfx)
    def hooksB(where):
        if where == 'top':
            if grp == 1 and tl == 1: barrier_site(A, pfx)
        if where == 'afterPV0':
            if grp == 0 and tl == 2: dma_site(A, 1, pfx)
            if grp == 1 and tl == 1: dma_site(A, 0, pfx)
            if grp == 1 and tl == 2: dma_site(A, 2, pfx)
    half(A, SA, SBb, QB16, QB8, b, OA, OB, b, b ^ 1, hooksA)
    half(A, SBb, SA, QA16, QA8, b ^ 1, OB, OA, b, b, hooksB)

def gen_attn(A, pfx="at", stamp=False):
    A.c("---- attention: wg -> (head, qblock)")
    if stamp: stamp_start(A)
    A(f"s_load_dwordx2 {s(sWS,2)}, s[0:1], {KARG['ws']}")
    A("v_lshrrev_b32 v1, 6, v0")
    A(f"v_and_b32 v0, 63, v0")
    A(f"v_readfirstlane_b32 {s(sWAVE)}, v1")
    A(f"s_and_b32 {s(sT)}, s2, 7")
    A(f"s_lshr_b32 {s(sT+1)}, s2, 3")
    A(f"s_lshr_b32 {s(sT+2)}, {s(sT+1)}, 3")
    A(f"s_lshl_b32 {s(sHEAD)}, {s(sT)}, 2")
    A(f"s_add_u32 {s(sHEAD)}, {s(sHEAD)}, {s(sT+2)}")
    A(f"s_and_b32 {s(sT+1)}, {s(sT+1)}, 7")
    A(f"s_lshr_b32 {s(sGRP)}, {s(sWAVE)}, 2")
    A(f"s_and_b32 {s(sT+4)}, {s(sWAVE)}, 3")
    A(f"s_lshl_b32 {s(sQT)}, {s(sT+1)}, 2")
    A(f"s_add_u32 {s(sQT)}, {s(sQT)}, {s(sT+4)}")
    A(f"s_lshl_b32 {s(sQT)}, {s(sQT)}, 1")
    A(f"v_lshlrev_b32 {v(vLANE16)}, 4, v0")
    A(f"v_and_b32 {v(vT+1)}, 31, v0")
    A(f"v_lshrrev_b32 {v(vT+2)}, 5, v0")
    A(f"v_lshlrev_b32 {v(vK8B)}, 3, {v(vT+1)}")
    A(f"v_mul_u32_u24 {v(vVB)}, 320, {v(vT+2)}")
    A(f"v_lshl_add_u32 {v(vVB)}, {v(vT+1)}, 4, {v(vVB)}")
    A(f"s_mov_b32 {s(sMV)}, 0x000FFFFF")
    A(f"s_mov_b32 {s(sMV+1)}, 0x000FFFFF")
    A(f"s_mov_b32 {s(sML)}, -1")
    A(f"s_mov_b32 {s(sML+1)}, 0")
    A(f"s_mul_i32 {s(sT+3)}, {s(sHEAD)}, {HEADB}")
    A("s_waitcnt lgkmcnt(0)")
    A(f"s_mov_b32 {s(sSRD)}, {s(sWS)}")
    A(f"s_and_b32 {s(sSRD+1)}, {s(sWS+1)}, 0xffff")
    A(f"s_mov_b32 {s(sSRD+2)}, {WS_USED}")
    A(f"s_mov_b32 {s(sSRD+3)}, 0x20000")
    A(f"s_and_b32 {s(sT)}, {s(sT+4)}, 1")
    A(f"s_mul_i32 {s(sT)}, {s(sT)}, 2560")
    A(f"s_cmp_ge_u32 {s(sT+4)}, 2")
    A(f"s_cselect_b32 {s(sT+1)}, {VF-KF}, 0")
    A(f"s_add_u32 {s(sT+1)}, {s(sT+1)}, {KF}")
    A(f"s_add_u32 {s(sGOFF)}, {s(sT)}, {s(sT+1)}")
    A(f"s_add_u32 {s(sGOFF)}, {s(sGOFF)}, {s(sT+3)}")
    A(f"s_mul_i32 {s(sT)}, {s(sGRP)}, 40960")
    A(f"s_add_u32 {s(sGOFF)}, {s(sGOFF)}, {s(sT)}")
    if ROT:
        A(f"s_and_b32 {s(sKI)}, s2, 0x38")
        A(f"s_lshr_b32 {s(sKI)}, {s(sKI)}, 3")
        A(f"s_mul_i32 {s(sT)}, {s(sKI)}, 5120")
        A(f"s_add_u32 {s(sGOFF)}, {s(sGOFF)}, {s(sT)}")
    A(f"s_mul_i32 {s(sLOFF)}, {s(sWAVE)}, 2560")
    for i in range(3): dma_piece(A, i)
    A(f"s_mul_i32 {s(sT+1)}, {s(sQT)}, 1280")
    A(f"s_add_u32 {s(sT+1)}, {s(sT+1)}, {s(sT+3)}")
    if QF: A(f"s_add_u32 {s(sT+1)}, {s(sT+1)}, {QF}")
    for r in (QA8, QA8+1, QB8, QB8+1): A(f"v_mov_b32 {v(r)}, 0")
    A(f"buffer_load_dwordx4 {v(QA16,4)}, {v(vLANE16)}, {s(sSRD,4)}, {s(sT+1)} offen")
    A(f"buffer_load_dwordx4 {v(QB16,4)}, {v(vLANE16)}, {s(sSRD,4)}, {s(sT+1)} offen offset:1280")
    A(f"s_mov_b64 exec, {s(sML,2)}")
    A(f"buffer_load_dwordx2 {v(QA8,2)}, {v(vK8B)}, {s(sSRD,4)}, {s(sT+1)} offen offset:1024")
    A(f"buffer_load_dwordx2 {v(QB8,2)}, {v(vK8B)}, {s(sSRD,4)}, {s(sT+1)} offen offset:2304")
    A(f"s_mov_b64 exec, -1")
    if PUBLISH:
        A(f"s_lshl_b32 {s(sT+2)}, {s(sQT)}, 7")
        A(f"s_add_u32 {s(sT+2)}, {s(sT+2)}, {GATE}")
        A(f"v_lshrrev_b32 v127, 1, {v(vK8B)}")
        A(f"buffer_load_dword v126, v127, {s(sSRD,4)}, {s(sT+2)} offen")
        A(f"buffer_load_dword v127, v127, {s(sSRD,4)}, {s(sT+2)} offen offset:128")
    for c in range(2):
        for i in range(3): dma_piece(A, i)
    A(f"s_mul_i32 {s(sT)}, {s(sGRP)}, 10240")
    A(f"v_add_u32 {v(vT)}, {s(sT)}, {v(vLANE16)}")
    A(f"s_add_u32 {s(sT+1)}, {s(sT)}, 1024")
    A(f"v_add_u32 {v(vK8B)}, {s(sT+1)}, {v(vK8B)}")
    A(f"s_add_u32 {s(sT+1)}, {s(sT)}, 5120")
    A(f"v_add_u32 {v(vVB)}, {s(sT+1)}, {v(vVB)}")
    for i in range(32): A(f"v_mov_b32 {v(OA+i)}, 0")
    for i in range(4, 8): A(f"v_mov_b32 {v(P+i)}, 0")
    A(f"v_cmp_eq_u32 vcc, 20, {v(vT+1)}")
    A(f"v_mov_b32 {v(vT+2)}, 0x3f803f80")
    A("s_nop 0")
    for i in range(16): A(f"v_cndmask_b32 {v(VB[0][0]+i)}, 0, {v(vT+2)}, vcc")
    A(f"s_mov_b32 {s(sKSLOT)}, 0")
    A(f"s_mov_b32 {s(sVSLOT)}, 0")
    A(f"s_mov_b32 {s(sCH)}, 0")
    A(f"v_mov_b32 {v(vKA)}, {v(vT)}")
    A(f"v_mov_b32 {v(vK8A)}, {v(vK8B)}")
    A(f"v_mov_b32 {v(vVA)}, {v(vVB)}")
    A("s_waitcnt vmcnt(6)")
    A("s_barrier")
    if stamp: stamp_mid(A, 48)
    read_K(A, 0, 0)
    read_K(A, 1, 1)
    read_V(A, 0, 0)
    A("s_waitcnt lgkmcnt(0)")
    S16(A, SA, KB[0][0], QA16)
    S8(A, SA, KB[0][1], QA8)
    A("s_nop 7")
    A("s_nop 3")
    if LOOPPRIO is not None: A(f"s_setprio {LOOPPRIO}")
    A(f"s_cmp_eq_u32 {s(sGRP)}, 1")
    A(f"s_cbranch_scc1 {pfx}_g1")
    for grp in range(2):
        A(".p2align 6")
        A.label(f"{pfx}_g{grp}")
        for tl in range(4):
            unit(A, tl, grp, f"{pfx}g{grp}")
        A(f"s_add_u32 {s(sCH)}, {s(sCH)}, 1")
        A(f"s_cmp_lt_u32 {s(sCH)}, 8")
        A(f"s_cbranch_scc1 {pfx}_g{grp}")
        if grp == 0: A(f"s_branch {pfx}_done")
    A.label(f"{pfx}_done")
    if LOOPPRIO is not None: A("s_setprio 3")
    A("s_nop 1")
    PV(A, OB, VB[1][1], P+4)
    if stamp: stamp_mid(A, 50)
    A("s_waitcnt lgkmcnt(0)")
    A("s_barrier")
    A("s_nop 7"); A("s_nop 3")
    A(f"s_and_b32 {s(sT)}, {s(sWAVE)}, 3")
    A(f"s_mul_i32 {s(sT)}, {s(sT)}, 6144")
    A(f"s_mul_i32 {s(sT+1)}, {s(sGRP)}, 3072")
    A(f"s_add_u32 {s(sT+2)}, {s(sT)}, {s(sT+1)}")
    A(f"s_xor_b32 {s(sT+1)}, {s(sGRP)}, 1")
    A(f"s_mul_i32 {s(sT+1)}, {s(sT+1)}, 3072")
    A(f"s_add_u32 {s(sT+3)}, {s(sT)}, {s(sT+1)}")
    A(f"v_add_u32 {v(vT)}, {s(sT+2)}, {v(vLANE16)}")
    A(f"v_add_u32 {v(vT+1)}, {s(sT+3)}, {v(vLANE16)}")
    A(f"s_cmp_eq_u32 {s(sGRP)}, 1")
    A(f"s_cbranch_scc1 {pfx}_x1")
    for j in range(3): A(f"ds_write_b128 {v(vT)}, {v(OB+4*j,4)} offset:{1024*j}")
    A(f"s_branch {pfx}_x2")
    A.label(f"{pfx}_x1")
    for j in range(3): A(f"ds_write_b128 {v(vT)}, {v(OA+4*j,4)} offset:{1024*j}")
    A("s_waitcnt lgkmcnt(0)")
    for i in range(12): A(f"v_mov_b32 {v(OA+i)}, {v(OB+i)}")
    for i in range(4): A(f"v_mov_b32 {v(QA16+i)}, {v(QB16+i)}")
    for i in range(2): A(f"v_mov_b32 {v(QA8+i)}, {v(QB8+i)}")
    A(f"s_add_u32 {s(sQT)}, {s(sQT)}, 1")
    if PUBLISH: A("v_mov_b32 v126, v127")
    A.label(f"{pfx}_x2")
    A("s_waitcnt lgkmcnt(0)")
    A("s_barrier")
    for j in range(3): A(f"ds_read_b128 {v(SA+4*j,4)}, {v(vT+1)} offset:{1024*j}")
    A("s_waitcnt lgkmcnt(0)")
    for i in range(12): A(f"v_add_f32 {v(OA+i)}, {v(OA+i)}, {v(SA+i)}")
    epilogue(A, pfx, stamp)

def epilogue(A, pfx, stamp=False):
    O = OA
    t = vT
    A(f"v_mov_b32 {v(t)}, {v(O+8)}")
    A(f"v_mov_b32 {v(t+1)}, {v(O+8)}")
    A("s_nop 1")
    A(f"v_permlane32_swap_b32 {v(t)}, {v(t+1)}")
    A("s_nop 1")
    A(f"v_mov_b32 {v(t+2)}, 0")
    for i in range(12):
        A(f"v_fma_f32 {v(t+2)}, {v(O+i)}, 0, {v(t+2)}")
    A(f"v_mov_b32 {v(t+3)}, 0x21800000")
    A(f"v_mov_b32 {v(t+4)}, 0x5d800000")
    A(f"v_cmp_nge_f32 {s(sT,2)}, {v(t+1)}, {v(t+3)}")
    A(f"v_cmp_nle_f32 {s(sT+2,2)}, {v(t+1)}, {v(t+4)}")
    A(f"v_cmp_u_f32 vcc, {v(t+2)}, {v(t+2)}")
    A(f"s_or_b64 {s(sT,2)}, {s(sT,2)}, {s(sT+2,2)}")
    A(f"s_or_b64 {s(sT,2)}, {s(sT,2)}, vcc")
    A(f"s_cbranch_scc1 {pfx}_slow")
    A.label(f"{pfx}_fin")
    A(f"v_rcp_f32 {v(t+2)}, {v(t+1)}")
    A("s_nop 0")
    if PUBLISH: A(f"v_mul_f32 {v(t+2)}, {v(t+2)}, v126")
    for i in range(12):
        A(f"v_mul_f32 {v(O+i)}, {v(O+i)}, {v(t+2)}")
    for i in range(6):
        A(f"v_cvt_pk_bf16_f32 {v(P+i)}, {v(O+2*i)}, {v(O+2*i+1)}")
    A(f"v_and_b32 {v(t+3)}, 31, v0")
    A(f"v_lshrrev_b32 {v(t+4)}, 5, v0")
    A(f"s_mul_i32 {s(sT)}, {s(sHEAD)}, 5")
    A(f"v_add_u32 {v(t+4)}, {s(sT)}, {v(t+4)}")
    A(f"v_lshrrev_b32 {v(t+5)}, 1, {v(t+4)}")
    A(f"v_lshlrev_b32 {v(t+5)}, 9, {v(t+5)}")
    A(f"v_and_b32 {v(t+4)}, 1, {v(t+4)}")
    A(f"v_lshl_add_u32 {v(t+5)}, {v(t+4)}, 3, {v(t+5)}")
    A(f"v_lshl_add_u32 {v(t+5)}, {v(t+3)}, 4, {v(t+5)}")
    A(f"s_mul_i32 {s(sT+1)}, {s(sQT)}, 40960")
    A(f"s_add_u32 {s(sT+1)}, {s(sT+1)}, {OF}")
    md = "sc1" if PUBLISH else ""
    A(f"buffer_store_dwordx2 {v(P,2)}, {v(t+5)}, {s(sSRD,4)}, {s(sT+1)} offen {md}")
    A(f"buffer_store_dwordx2 {v(P+2,2)}, {v(t+5)}, {s(sSRD,4)}, {s(sT+1)} offen offset:512 {md}")
    A(f"s_mov_b64 exec, {s(sML,2)}")
    A(f"buffer_store_dwordx2 {v(P+4,2)}, {v(t+5)}, {s(sSRD,4)}, {s(sT+1)} offen offset:1024 {md}")
    if PUBLISH:
        A("s_waitcnt vmcnt(0)")
        A(f"s_lshl_b32 {s(sT+2)}, {s(sQT)}, 5")
        A(f"s_add_u32 {s(sT+2)}, {s(sT+2)}, {s(sHEAD)}")
        A(f"s_lshl_b32 {s(sT+2)}, {s(sT+2)}, 2")
        A(f"s_add_u32 {s(sT+2)}, {s(sT+2)}, {OFLAG}")
        A(f"v_mov_b32 {v(t)}, 0")
        A(f"v_mov_b32 {v(t+1)}, 1")
        A("s_mov_b64 exec, 1")
        A(f"buffer_store_dword {v(t+1)}, {v(t)}, {s(sSRD,4)}, {s(sT+2)} offen sc1")
    if stamp: stamp_end(A, sWAVE, sSRD, 100)
    A("s_endpgm")
    A.label(f"{pfx}_slow")
    M, AL, TM, TM2 = SBb, SBb+1, SBb+2, SBb+3
    vKo, vVo = SBb+4, SBb+5
    sb = SA
    K16, K8 = KB[0]; V0, V1 = VB[0]
    for i in range(16): A(f"v_mov_b32 {v(O+i)}, 0")
    A(f"v_mov_b32 {v(M)}, 0xff800000")
    A(f"s_mul_i32 {s(sT+3)}, {s(sHEAD)}, {HEADB}")
    A(f"s_add_u32 {s(sT+4)}, {s(sT+3)}, {KF}")
    A(f"s_add_u32 {s(sT+5)}, {s(sT+3)}, {VF}")
    A(f"v_and_b32 {v(vKo)}, 31, v0")
    A(f"v_lshrrev_b32 {v(vVo)}, 5, v0")
    A(f"v_mul_u32_u24 {v(vVo)}, 320, {v(vVo)}")
    A(f"v_lshl_add_u32 {v(vVo)}, {v(vKo)}, 4, {v(vVo)}")
    A(f"v_lshlrev_b32 {v(vKo)}, 3, {v(vKo)}")
    A(f"s_mov_b32 {s(sCH)}, 0")
    A.label(f"{pfx}_sl")
    A(f"buffer_load_dwordx4 {v(K16,4)}, {v(vLANE16)}, {s(sSRD,4)}, {s(sT+4)} offen")
    A(f"buffer_load_dwordx2 {v(K8,2)}, {v(vKo)}, {s(sSRD,4)}, {s(sT+4)} offen offset:1024")
    A(f"s_mov_b64 exec, {s(sMV,2)}")
    A(f"buffer_load_dwordx4 {v(V0,4)}, {v(vVo)}, {s(sSRD,4)}, {s(sT+5)} offen")
    A(f"buffer_load_dwordx4 {v(V1,4)}, {v(vVo)}, {s(sSRD,4)}, {s(sT+5)} offen offset:640")
    A(f"s_mov_b64 exec, -1")
    A("s_waitcnt vmcnt(0)")
    S16(A, sb, K16, QA16)
    S8(A, sb, K8, QA8)
    A("s_nop 7"); A("s_nop 7")
    A(f"v_max3_f32 {v(TM)}, {v(sb)}, {v(sb+1)}, {v(sb+2)}")
    for i in range(3, 15, 2):
        A(f"v_max3_f32 {v(TM)}, {v(TM)}, {v(sb+i)}, {v(sb+i+1)}")
    A(f"v_max_f32 {v(TM)}, {v(TM)}, {v(sb+15)}")
    A(f"v_mov_b32 {v(TM2)}, {v(TM)}")
    A("s_nop 1")
    A(f"v_permlane32_swap_b32 {v(TM)}, {v(TM2)}")
    A("s_nop 1")
    A(f"v_max3_f32 {v(TM)}, {v(TM)}, {v(TM2)}, {v(M)}")
    A(f"v_sub_f32 {v(AL)}, {v(M)}, {v(TM)}")
    A(f"v_exp_f32 {v(AL)}, {v(AL)}")
    A(f"v_mov_b32 {v(M)}, {v(TM)}")
    for i in range(16): A(f"v_sub_f32 {v(sb+i)}, {v(sb+i)}, {v(TM)}")
    for i in range(16): A(f"v_mul_f32 {v(O+i)}, {v(O+i)}, {v(AL)}")
    for i in range(16): E(A, sb, i)
    A("s_nop 0")
    for i in range(8): C(A, sb, i)
    A("s_nop 3")
    PV(A, O, V0, P)
    PV(A, O, V1, P+4)
    A("s_nop 7"); A("s_nop 7")
    A(f"s_add_u32 {s(sT+4)}, {s(sT+4)}, 1280")
    A(f"s_add_u32 {s(sT+5)}, {s(sT+5)}, 1280")
    A(f"s_add_u32 {s(sCH)}, {s(sCH)}, 1")
    A(f"s_cmp_lt_u32 {s(sCH)}, 64")
    A(f"s_cbranch_scc1 {pfx}_sl")
    A(f"v_mov_b32 {v(t)}, {v(O+8)}")
    A(f"v_mov_b32 {v(t+1)}, {v(O+8)}")
    A("s_nop 1")
    A(f"v_permlane32_swap_b32 {v(t)}, {v(t+1)}")
    A("s_nop 1")
    A(f"s_branch {pfx}_fin")
```

```python
from asmlib import *
from layout import *
from gemm2 import G1, G2, mfma
from k1 import make_srd, f32bits

def smod(A, dst, terms, n, T):
    first = True
    for (r, c) in terms:
        if first: A(f"s_mul_i32 {s(T+8)}, {s(r)}, {c}"); first = False
        else:
            A(f"s_mul_i32 {s(T+9)}, {s(r)}, {c}")
            A(f"s_add_u32 {s(T+8)}, {s(T+8)}, {s(T+9)}")
    A(f"s_mul_i32 {s(T+9)}, {s(T+8)}, {(65536 + n - 1)//n}")
    A(f"s_lshr_b32 {s(T+9)}, {s(T+9)}, 16")
    A(f"s_mul_i32 {s(T+9)}, {s(T+9)}, {n}")
    A(f"s_sub_u32 {s(dst)}, {s(T+8)}, {s(T+9)}")

BPQ = 64 * 20 * 2048

def ffn_ids(A, T, sRB, sKQ, sMEM, idreg="s2", base=0):
    if base: A(f"s_sub_u32 {s(T+5)}, {idreg}, {base}"); idreg = s(T+5)
    A(f"s_and_b32 {s(T)}, {idreg}, 7")
    A(f"s_lshr_b32 {s(T+1)}, {idreg}, 3")
    A(f"s_and_b32 {s(sKQ)}, {s(T)}, 3")
    A(f"s_lshr_b32 {s(T+2)}, {s(T)}, 2")
    A(f"s_lshl_b32 {s(T+2)}, {s(T+2)}, 3")
    A(f"s_lshr_b32 {s(T+3)}, {s(T+1)}, 2")
    A(f"s_add_u32 {s(sRB)}, {s(T+2)}, {s(T+3)}")
    A(f"s_and_b32 {s(sMEM)}, {s(T+1)}, 3")

def gen_ffn1(A, P, sRB, sKQ, sMEM, stamp=None, store_mod="", end=True):
    g = G1(P, BN=96, BK=32, R=5, NS=20, ldx=1280, ldw=3072, WM=4, WN=1)
    T = g.sT
    sJ = 46
    A(f"s_load_dwordx2 s[4:5], s[0:1], {KARG['A_x']}")
    A(f"s_load_dwordx2 s[6:7], s[0:1], {KARG['B_w1']}")
    A(f"s_load_dwordx2 s[48:49], s[0:1], {KARG['B_b1']}")
    A(f"s_lshl_b32 {s(sJ)}, {s(sKQ)}, 2")
    A(f"s_add_u32 {s(sJ)}, {s(sJ)}, {s(sMEM)}")
    A(f"s_mul_i32 {s(g.sXOFF)}, {s(sRB)}, {128*1280}")
    A(f"s_mul_i32 {s(g.sWOFF)}, {s(sJ)}, 192")
    smod(A, g.sROT, [(sRB, 3), (sJ, 7)], 20, T)
    A("s_waitcnt lgkmcnt(0)")
    make_srd(A, g.sXSRD, 4, S*D*2)
    make_srd(A, g.sWSRD, 6, D*F*2)
    make_srd(A, g.sOSRD, 44, WS_USED)
    A(f"s_cmp_ge_u32 {s(g.sWAVE)}, 4")
    A(f"s_cbranch_scc1 {P}_loader")
    make_srd(A, 52, 48, F*2)
    t = g.vT
    A(f"v_lshrrev_b32 {v(t)}, 5, v0")
    A(f"v_lshlrev_b32 {v(t)}, 3, {v(t)}")
    A(f"s_mul_i32 {s(T)}, {s(sJ)}, 192")
    for nb in range(3):
        for gg in range(4):
            A(f"buffer_load_dwordx2 {v(g.vACC + nb*16 + 4*gg + 2, 2)}, {v(t)}, s[52:55], {s(T)} offen offset:{64*nb + 16*gg}")
    g.compute_setup(A)
    A("s_waitcnt vmcnt(0)")
    for nb in range(3):
        for gg in range(4):
            a = g.vACC + nb*16 + 4*gg
            A(f"v_lshlrev_b32 {v(a)}, 16, {v(a+2)}")
            A(f"v_and_b32 {v(a+1)}, 0xffff0000, {v(a+2)}")
            A(f"v_lshlrev_b32 {v(a+2)}, 16, {v(a+3)}")
            A(f"v_and_b32 {v(a+3)}, 0xffff0000, {v(a+3)}")
    g.compute(A, 'T', zero_acc=False)
    if stamp: stamp.mid(A, 0)
    A(f"s_lshl_b32 {s(T)}, {s(sRB)}, 2")
    A(f"s_add_u32 {s(T)}, {s(T)}, {s(g.sWAVE)}")
    A(f"s_mul_i32 {s(T)}, {s(T)}, {96*1024}")
    A(f"s_mul_i32 {s(T+1)}, {s(sJ)}, {6*1024}")
    A(f"s_add_u32 {s(T)}, {s(T)}, {s(T+1)}")
    A(f"s_add_u32 {s(T)}, {s(T)}, {HF}")
    A(f"v_lshlrev_b32 {v(t)}, 4, v0")
    A("s_nop 7")
    A("s_nop 3")
    for nb in range(3):
        for m in range(2):
            a = g.vACC + nb*16 + 8*m
            d0 = t + 2 + 4*((nb*2+m) & 1)
            for i in range(8): A(f"v_max_f32 {v(a+i)}, 0, {v(a+i)}")
            for i in range(8): A(f"v_mul_f32 {v(a+i)}, {v(a+i)}, {v(a+i)}")
            for i in range(4): A(f"v_cvt_pk_bf16_f32 {v(d0+i)}, {v(a+2*i)}, {v(a+2*i+1)}")
            st = 2*nb + m
            if st == 4: A(f"s_add_u32 {s(T)}, {s(T)}, 4096")
            A(f"buffer_store_dwordx4 {v(d0,4)}, {v(t)}, {s(g.sOSRD,4)}, {s(T)} offen offset:{(st%4)*1024} {store_mod}")
    if end:
        if stamp: stamp.end(A, g.sWAVE, g.sOSRD, t+16)
        A("s_endpgm")
    else:
        A(f"s_branch {P}_done")
    A.label(f"{P}_loader")
    g.loader(A)
    if end: A("s_endpgm")
    else: A.label(f"{P}_done")
    return g

def gen_ffn2(A, P, sRB, sKQ, sMEM, stamp=None, load_mod=""):
    g = G2(P, BN=160, BK=64, R=4, NS=6, ldw=1280, kperm=True, mode='roll', PD=4)
    T = g.sT
    A(f"s_load_dwordx2 s[6:7], s[0:1], {KARG['B_w2']}")
    A(f"s_mul_i32 {s(g.sWOFF)}, {s(sKQ)}, {384*1280}")
    A(f"s_mul_i32 {s(T)}, {s(sMEM)}, 320")
    A(f"s_add_u32 {s(g.sWOFF)}, {s(g.sWOFF)}, {s(T)}")
    smod(A, g.sROT, [(sRB, 1), (sMEM, 3)], 6, T)
    A("s_waitcnt lgkmcnt(0)")
    make_srd(A, g.sWSRD, 6, F*D*2)
    make_srd(A, g.sXSRD, 44, WS_USED)
    make_srd(A, g.sOSRD, 44, WS_USED)
    A(f"s_cmp_ge_u32 {s(g.sWAVE)}, 4")
    A(f"s_cbranch_scc1 {P}_loader")
    A(f"s_lshl_b32 {s(T)}, {s(sRB)}, 2")
    A(f"s_add_u32 {s(T)}, {s(T)}, {s(g.sWAVE)}")
    A(f"s_mul_i32 {s(g.sXOFF)}, {s(T)}, {96*1024}")
    A(f"s_mul_i32 {s(T+1)}, {s(sKQ)}, {24*1024}")
    A(f"s_add_u32 {s(g.sXOFF)}, {s(g.sXOFF)}, {s(T+1)}")
    A(f"s_add_u32 {s(g.sXOFF)}, {s(g.sXOFF)}, {HF}")
    A(f"s_mov_b32 s47, {s(T)}")
    g.compute_setup(A)
    g.prefetch_x(A)
    g.compute(A)
    if stamp: stamp.mid(A, 0)
    t = g.vT
    A(f"s_mul_i32 {s(T)}, s47, 40960")
    A(f"s_mul_i32 {s(T+1)}, {s(sKQ)}, {BPQ}")
    A(f"s_add_u32 {s(T)}, {s(T)}, {s(T+1)}")
    A(f"s_mul_i32 {s(T+1)}, {s(sMEM)}, {5*2048}")
    A(f"s_add_u32 {s(T)}, {s(T)}, {s(T+1)}")
    A(f"s_add_u32 {s(T)}, {s(T)}, {BP}")
    A("s_nop 7")
    A("s_nop 3")
    for j in range(5):
        for m in range(2):
            a = g.vACC + j*16 + 8*m
            d0 = g.vXF + 4*((j*2+m) & 1)
            for i in range(4): A(f"v_cvt_pk_bf16_f32 {v(d0+i)}, {v(a+2*i)}, {v(a+2*i+1)}")
            st = 2*j + m
            if st and st % 4 == 0: A(f"s_add_u32 {s(T)}, {s(T)}, 4096")
            A(f"buffer_store_dwordx4 {v(d0,4)}, {v(g.vL16)}, {s(g.sOSRD,4)}, {s(T)} offen offset:{(st%4)*1024}")
            A("s_nop 0")
    if stamp: stamp.end(A, g.sWAVE, g.sOSRD, g.vXF+8)
    A("s_endpgm")
    A.label(f"{P}_loader")
    g.loader(A)
    A("s_endpgm")
    return g

def common_entry(A, P, nwg, stamp=None):
    A(f"s_cmp_ge_u32 s2, {nwg}")
    A(f"s_cbranch_scc1 {P}_exit")
    if stamp: stamp.start(A)
    A(f"s_load_dwordx2 s[44:45], s[0:1], {KARG['ws']}")
    A("v_lshrrev_b32 v1, 6, v0")
    A("v_and_b32 v0, 63, v0")
    A(f"v_readfirstlane_b32 s20, v1")

def gen_k3(A, P="k3", stamp=None):
    g = G2(P, BN=64, BK=64, R=5, NS=10, ldw=1280, kperm=False, mode='dbl', PD=4)
    T = g.sT
    sRB, sCB = 40, 41
    common_entry(A, P, 160, stamp)
    A(f"s_load_dwordx2 s[6:7], s[0:1], {KARG['A_wo']}")
    A(f"s_load_dwordx2 s[48:49], s[0:1], {KARG['B_b2']}")
    A(f"s_load_dwordx2 s[50:51], s[0:1], {KARG['out']}")
    A(f"s_and_b32 {s(T)}, s2, 7")
    A(f"s_lshr_b32 {s(T+1)}, s2, 3")
    A(f"s_lshl_b32 {s(sRB)}, {s(T)}, 1")
    A(f"s_and_b32 {s(T+2)}, {s(T+1)}, 1")
    A(f"s_add_u32 {s(sRB)}, {s(sRB)}, {s(T+2)}")
    A(f"s_lshr_b32 {s(sCB)}, {s(T+1)}, 1")
    A(f"s_lshl_b32 {s(g.sWOFF)}, {s(sCB)}, 7")
    smod(A, g.sROT, [(sRB, 3), (sCB, 1)], 10, T)
    A("s_waitcnt lgkmcnt(0)")
    make_srd(A, g.sWSRD, 6, D*D*2)
    make_srd(A, g.sXSRD, 44, WS_USED)
    make_srd(A, g.sOSRD, 50, S*D*2)
    A(f"s_cmp_ge_u32 {s(g.sWAVE)}, 4")
    A(f"s_cbranch_scc1 {P}_loader")
    A(f"s_lshl_b32 {s(T)}, {s(sRB)}, 2")
    A(f"s_add_u32 {s(T)}, {s(T)}, {s(g.sWAVE)}")
    A(f"s_mul_i32 {s(g.sXOFF)}, {s(T)}, 40960")
    A(f"s_add_u32 {s(g.sXOFF)}, {s(g.sXOFF)}, {OF}")
    A(f"s_mov_b32 s47, {s(T)}")
    g.compute_setup(A)
    g.prefetch_x(A)
    t = g.vT
    EP = t + 8
    B2 = EP + 64
    GV = B2 + 16
    g.compute(A)
    if stamp: stamp.mid(A, 0)
    make_srd(A, 52, 48, D*2)
    A(f"s_mul_i32 {s(T)}, s47, 40960")
    A(f"s_lshl_b32 {s(T+1)}, {s(sCB)}, 12")
    A(f"s_add_u32 {s(T)}, {s(T)}, {s(T+1)}")
    A(f"s_add_u32 {s(T)}, {s(T)}, {BP}")
    for kq in range(4):
        for j in range(2):
            for m in range(2):
                A(f"buffer_load_dwordx4 {v(EP + ((j*2+m)*4 + kq)*4, 4)}, {v(g.vL16)}, {s(g.sXSRD,4)}, {s(T)} offen offset:{j*2048+m*1024}")
        if kq < 3: A(f"s_add_u32 {s(T)}, {s(T)}, {BPQ}")
    A(f"v_lshrrev_b32 {v(t)}, 5, v0")
    A(f"v_lshlrev_b32 {v(t)}, 3, {v(t)}")
    A(f"s_lshl_b32 {s(T+1)}, {s(sCB)}, 7")
    for j in range(2):
        for gg in range(4):
            A(f"buffer_load_dwordx2 {v(B2 + (j*4+gg)*2, 2)}, {v(t)}, s[52:55], {s(T+1)} offen offset:{64*j+16*gg}")
    A(f"v_and_b32 {v(t+1)}, 31, v0")
    A(f"s_lshl_b32 {s(T+2)}, s47, 5")
    A(f"v_add_u32 {v(t+1)}, {s(T+2)}, {v(t+1)}")
    A(f"v_lshlrev_b32 {v(t+2)}, 2, {v(t+1)}")
    A(f"v_add_u32 {v(t+2)}, {GATE}, {v(t+2)}")
    A(f"buffer_load_dword {v(GV)}, {v(t+2)}, {s(g.sXSRD,4)}, 0 offen")
    A(f"v_mul_u32_u24 {v(t+3)}, 1280, {v(t+1)}")
    A(f"v_lshl_add_u32 {v(t+3)}, {v(t)}, 1, {v(t+3)}")
    A(f"s_lshl_b32 {s(T+3)}, {s(sCB)}, 7")
    A("s_waitcnt vmcnt(0)")
    A(f"v_sub_f32 {v(GV+1)}, 1.0, {v(GV)}")
    A(f"v_cvt_pk_bf16_f32 {v(GV+1)}, {v(GV+1)}, {v(GV+1)}")
    A(f"v_lshlrev_b32 {v(GV+1)}, 16, {v(GV+1)}")
    for j in range(2):
        for m in range(2):
            a = g.vACC + j*16 + 8*m
            for i in range(4):
                gg = 2*m + (i >> 1)
                b2r = B2 + (j*4+gg)*2 + (i & 1)
                lo, hi = t+4, t+5
                A(f"v_lshlrev_b32 {v(lo)}, 16, {v(b2r)}")
                A(f"v_and_b32 {v(hi)}, 0xffff0000, {v(b2r)}")
                for kq in range(4):
                    p = EP + ((j*2+m)*4 + kq)*4 + i
                    A(f"v_lshlrev_b32 {v(t+6)}, 16, {v(p)}")
                    A(f"v_and_b32 {v(t+7)}, 0xffff0000, {v(p)}")
                    A(f"v_add_f32 {v(lo)}, {v(lo)}, {v(t+6)}")
                    A(f"v_add_f32 {v(hi)}, {v(hi)}, {v(t+7)}")
                A(f"v_mul_f32 {v(lo)}, {v(lo)}, {v(GV+1)}")
                A(f"v_mul_f32 {v(hi)}, {v(hi)}, {v(GV+1)}")
                A(f"v_fma_f32 {v(a+2*i)}, {v(a+2*i)}, {v(GV)}, {v(lo)}")
                A(f"v_fma_f32 {v(a+2*i+1)}, {v(a+2*i+1)}, {v(GV)}, {v(hi)}")
            d0 = EP + (j*2+m)*16
            for i in range(4): A(f"v_cvt_pk_bf16_f32 {v(d0+i)}, {v(a+2*i)}, {v(a+2*i+1)}")
            A("s_nop 1")
            A(f"v_permlane32_swap_b32 {v(d0)}, {v(d0+2)}")
            A(f"v_permlane32_swap_b32 {v(d0+1)}, {v(d0+3)}")
            A("s_nop 1")
            A(f"buffer_store_dwordx4 {v(d0,4)}, {v(t+3)}, {s(g.sOSRD,4)}, {s(T+3)} offen offset:{64*j+32*m}")
    if stamp: stamp.end(A, g.sWAVE, g.sXSRD, t+4 if (t+4) % 2 == 0 else t+5)
    A("s_endpgm")
    A.label(f"{P}_loader")
    g.loader(A)
    A.label(f"{P}_exit")
    A("s_endpgm")
    return g, GV + 2
```

```python
from asmlib import *
from layout import *
from gemm2 import mfma, runs, uid
from k1 import make_srd

BN, BK, R = 96, 64, 6
RB = BN * 2
SLOT = BK * RB
NS1, NS2, NS3 = 10, 24, 10
HCNT, OCNT = 0, 64

sW = 20
sXS, sWS_, sOS = 8, 12, 16
sXOFF, sWOFF, sWSTEP = 21, 22, 23
T = 24
sSLOT, sCNT, sDLT, sNEXT = 36, 37, 38, 39
sRB128, sJ, sRB64, sCB, sHAS2 = 40, 41, 42, 43, 46
sDBG = 48
sP1, sP2, sP3 = 50, 52, 54
sB1, sB2 = 56, 58
sTILE, sKH = 47, 7
sROT1, sROT2, sROT3 = 80, 81, 82
sKI, sNSP = 83, 6
NOROT = False
ABL = set()
TRACE = False
PS = 2
TSTAMP = False
SLEEP = 2
P1, PE, P2, P3, PL = None, None, None, None, None
vL16, vWN, vWP, vWA, vG, vT0 = 2, 3, 4, 5, 126, 127
vX, vWF, vACC = 6, 54, 78

STAMPF = None
XMOD = "sc1"

def wreads(A, sx, buf):
    for j in range(3):
        for hf in range(2):
            rowoff = sx * 16 + (8 if wreads.perm else 4) * hf
            A(f"ds_read_b64_tr_b16 {v(vWF + (buf*3 + j)*4 + 2*hf, 2)}, {v(vWA)} offset:{rowoff*RB + 64*j}")
wreads.perm = False

def mfmas(A, xreg, buf):
    if 'nomfma' in ABL: return
    for j in range(3):
        acc = vACC + 16*j
        A(mfma(acc, vWF + (buf*3+j)*4, xreg, v(acc,16)))

def advance(A):
    tot = R * SLOT
    A(f"s_add_u32 {s(sSLOT)}, {s(sSLOT)}, {SLOT}")
    A(f"s_cmp_ge_u32 {s(sSLOT)}, {tot}")
    A(f"s_cselect_b32 {s(sDLT)}, {tot}, 0")
    A(f"s_sub_u32 {s(sSLOT)}, {s(sSLOT)}, {s(sDLT)}")
    A(f"s_sub_u32 {s(sDLT)}, {SLOT}, {s(sDLT)}")
    A(f"v_add_u32 {v(vWA)}, {s(sDLT)}, {v(vWA)}")

def kstep(A, offreg, step, ns, tmp):
    A(f"s_add_u32 {s(sKI)}, {s(sKI)}, 1")
    A(f"s_cmp_eq_u32 {s(sKI)}, {ns}")
    A(f"s_cselect_b32 {s(sKI)}, 0, {s(sKI)}")
    A(f"s_cselect_b32 {s(tmp)}, {step*ns}, 0")
    A(f"s_add_u32 {s(offreg)}, {s(offreg)}, {step}")
    A(f"s_sub_u32 {s(offreg)}, {s(offreg)}, {s(tmp)}")
def kinit(A, offreg, step, rot, tmp):
    A(f"s_mov_b32 {s(sKI)}, {s(rot)}")
    A(f"s_mul_i32 {s(tmp)}, {s(rot)}, {step}")
    A(f"s_add_u32 {s(offreg)}, {s(offreg)}, {s(tmp)}")

def xload(A, reg, imm, mod=""):
    if 'nox' in ABL and mod:
        A("s_nop 0"); return
    if 'xplain' in ABL: mod = ""
    A(f"buffer_load_dwordx4 {v(reg,4)}, {v(vL16)}, {s(sXS,4)}, {s(sXOFF)} offen offset:{imm} {mod}")

def poll(A, off_sreg, tag):
    A(f"s_cmp_lg_u32 {s(sW)}, 0")
    A(f"s_cbranch_scc1 {tag}_pd")
    A(f"v_lshlrev_b32 {v(vT0)}, 2, v0")
    A(f"s_mov_b32 {s(T+8)}, 0x20000")
    A.label(f"{tag}_pl")
    A(f"buffer_load_dword {v(vX)}, {v(vT0)}, {s(sXS,4)}, {s(off_sreg)} offen sc1")
    A("s_waitcnt vmcnt(0)")
    A(f"v_cmp_eq_u32 vcc, 0, {v(vX)}")
    A("s_nop 4")
    A(f"s_cbranch_vccz {tag}_pd")
    A(f"s_sleep {SLEEP}")
    A(f"s_sub_u32 {s(T+8)}, {s(T+8)}, 1")
    A(f"s_cmp_lg_u32 {s(T+8)}, 0")
    A(f"s_cbranch_scc1 {tag}_pl")
    A.label(f"{tag}_pd")

def signal(A, srd, off_sreg, vtmp, vtmp2):
    A(f"v_mov_b32 {v(vtmp)}, 0")
    A(f"v_mov_b32 {v(vtmp2)}, 1")
    A("s_mov_b64 exec, 1")
    A(f"buffer_store_dword {v(vtmp2)}, {v(vtmp)}, {s(srd,4)}, {s(off_sreg)} offen sc1")
    A("s_mov_b64 exec, -1")

def load_bias(A, ptr, size, off_sreg):
    make_srd(A, T+4, ptr, size)
    A(f"v_lshrrev_b32 {v(vT0)}, 5, v0")
    A(f"v_lshlrev_b32 {v(vT0)}, 3, {v(vT0)}")
    for nb in range(3):
        for gg in range(4):
            A(f"buffer_load_dwordx2 {v(vACC + nb*16 + 4*gg + 2, 2)}, {v(vT0)}, {s(T+4,4)}, {s(off_sreg)} offen offset:{64*nb + 16*gg}")
def unpack_bias(A, scale=None):
    for nb in range(3):
        for gg in range(4):
            a = vACC + nb*16 + 4*gg
            A(f"v_lshlrev_b32 {v(a)}, 16, {v(a+2)}")
            A(f"v_and_b32 {v(a+1)}, 0xffff0000, {v(a+2)}")
            A(f"v_lshlrev_b32 {v(a+2)}, 16, {v(a+3)}")
            A(f"v_and_b32 {v(a+3)}, 0xffff0000, {v(a+3)}")
            if scale is not None:
                for i in range(4): A(f"v_mul_f32 {v(a+i)}, {v(a+i)}, {v(scale)}")

def load_g1(A, tile_sreg):
    A(f"v_and_b32 {v(vG)}, 31, v0")
    A(f"s_lshl_b32 {s(T+10)}, {s(tile_sreg)}, 5")
    A(f"v_add_u32 {v(vG)}, {s(T+10)}, {v(vG)}")
    A(f"v_lshlrev_b32 {v(vG)}, 2, {v(vG)}")
    A(f"v_add_u32 {v(vG)}, {GATE}, {v(vG)}")
    A(f"buffer_load_dword {v(vG)}, {v(vG)}, {s(sXS,4)}, 0 offen")
def one_minus(A):
    A(f"v_sub_f32 {v(vG)}, 1.0, {v(vG)}")
    A(f"v_cvt_pk_bf16_f32 {v(vG)}, {v(vG)}, {v(vG)}")
    A(f"v_lshlrev_b32 {v(vG)}, 16, {v(vG)}")

def gen_loader(A, P):
    A.c("---- F loader")
    if PL is not None: A(f"s_setprio {PL}")
    lw = T
    A(f"s_sub_u32 {s(lw)}, {s(sW)}, 4")
    for j in range(3):
        A(f"s_mul_i32 {s(T+1)}, {s(lw)}, 192")
        A(f"v_add_u32 v10, {s(T+1)}, v0")
        if j: A(f"v_add_u32 v10, {64*j}, v10")
        A(f"v_mul_u32_u24 v11, {(65536+11)//12}, v10")
        A("v_lshrrev_b32 v11, 16, v11")
        A("v_mul_u32_u24 v12, 12, v11")
        A("v_sub_u32 v10, v10, v12")
        A("v_lshlrev_b32 v10, 4, v10")
        A("v_mul_u32_u24 v12, 3072, v11")
        A(f"v_add_u32 v{2+j}, v10, v12")
        A("v_mul_u32_u24 v12, 1280, v11")
        A(f"v_add_u32 v{5+j}, v10, v12")
        if j:
            A(f"v_subrev_u32 v{2+j}, {1024*j}, v{2+j}")
            A(f"v_subrev_u32 v{5+j}, {1024*j}, v{5+j}")
    sLW = T+4
    A(f"s_mul_i32 {s(sLW)}, {s(lw)}, 3072")
    sS1, sS2, sS3 = 12, 64, 68
    sS2, sS3 = 84, 88
    make_srd(A, sS1, sP1, D*F*2)
    make_srd(A, sS2, sP2, F*D*2)
    make_srd(A, sS3, sP3, D*D*2)
    sB1o, sB2o = T+5, T+6
    A(f"s_mul_i32 {s(sB1o)}, {s(sJ)}, 192")
    A(f"s_mul_i32 {s(sB2o)}, {s(sCB)}, 192")
    sOFFN = T+7
    def prep(t):
        if t < NS1: rot, ns, loc, step, base = sROT1, NS1, t, BK*3072, sB1o
        elif t < NS1+NS2: rot, ns, loc, step, base = sROT2, NS2, t - NS1, BK*1280, sB2o
        else: rot, ns, loc, step, base = sROT3, NS3, t - NS1 - NS2, BK*1280, sB2o
        A(f"s_add_u32 {s(T+8)}, {s(rot)}, {loc}")
        A(f"s_cmp_ge_u32 {s(T+8)}, {ns}")
        A(f"s_cselect_b32 {s(T+9)}, {ns}, 0")
        A(f"s_sub_u32 {s(T+8)}, {s(T+8)}, {s(T+9)}")
        A(f"s_mul_i32 {s(T+8)}, {s(T+8)}, {step}")
        A(f"s_add_u32 {s(sOFFN)}, {s(T+8)}, {s(base)}")
        A(f"s_add_u32 {s(T+10)}, {s(sLW)}, {(t % R)*SLOT}")
    def issue(t):
        srd = sS1 if t < NS1 else (sS2 if t < NS1+NS2 else sS3)
        vb = 2 if t < NS1 else 5
        A(f"s_mov_b32 m0, {s(T+10)}")
        A("s_nop 0")
        for j in range(3):
            if 'now' not in ABL: A(f"buffer_load_dwordx4 v{vb+j}, {s(srd,4)}, {s(sOFFN)} offen offset:{1024*j} lds")
    def run(NS, extra_barriers):
        npre = 3
        issued = npre - 1
        for i in range(NS):
            if i in extra_barriers: A("s_barrier")
            wait = 3 * (issued - i)
            do = issued + 1 <= min(NS - 1, i - 2 + R)
            if do: prep(issued + 1)
            A(f"s_waitcnt vmcnt({wait})")
            if TRACE:
                A("s_memtime s[92:93]"); A("s_waitcnt lgkmcnt(0)"); A(f"v_writelane_b32 v52, s92, {i}")
            A("s_barrier")
            if TRACE:
                A("s_memtime s[92:93]"); A("s_waitcnt lgkmcnt(0)"); A(f"v_writelane_b32 v50, s92, {i}")
            if do:
                issue(issued + 1); issued += 1
    for t in range(3):
        prep(t); issue(t)
    A(f"s_cmp_eq_u32 {s(sHAS2)}, 0")
    A(f"s_cbranch_scc1 {P}_short")
    run(NS1+NS2+NS3, {NS1, NS1+NS2})
    if TRACE:
        A("v_writelane_b32 v50, s60, 63")
        make_srd(A, 16, 44, WS_USED)
        A(f"s_lshl_b32 s92, s2, 3")
        A(f"s_add_u32 s92, s92, {s(sW)}")
        A(f"s_lshl_b32 s92, s92, 8")
        A(f"s_add_u32 s92, s92, {0x2800000}")
        A("v_lshlrev_b32 v51, 2, v0")
        A(f"buffer_store_dword v50, v51, s[16:19], s92 offen")
    A("s_endpgm")
    A.label(f"{P}_short")
    run(NS1, set())
    A("s_endpgm")

def gen_frole(A, P, stamp=None):
    A.c("==== F role")
    A(f"s_setprio {PS}")
    if stamp: stamp.start(A)
    A(f"s_load_dwordx2 s[44:45], s[0:1], {KARG['ws']}")
    A(f"s_load_dwordx2 {s(sP1,2)}, s[0:1], {KARG['B_w1']}")
    A(f"s_load_dwordx2 {s(sP2,2)}, s[0:1], {KARG['B_w2']}")
    A(f"s_load_dwordx2 {s(sP3,2)}, s[0:1], {KARG['A_wo']}")
    A(f"s_load_dwordx2 {s(sB1,2)}, s[0:1], {KARG['B_b1']}")
    A(f"s_load_dwordx2 {s(sB2,2)}, s[0:1], {KARG['B_b2']}")
    A(f"s_load_dwordx2 s[4:5], s[0:1], {KARG['out']}")
    A("v_lshrrev_b32 v1, 6, v0")
    A("v_and_b32 v0, 63, v0")
    A(f"v_readfirstlane_b32 {s(sW)}, v1")
    A(f"s_sub_u32 {s(T)}, s2, 256")
    A(f"s_and_b32 {s(T+1)}, {s(T)}, 7")
    A(f"s_lshr_b32 {s(T+2)}, {s(T)}, 3")
    A(f"s_and_b32 {s(T+3)}, {s(T+1)}, 3")
    A(f"s_lshr_b32 {s(T+4)}, {s(T+1)}, 2")
    A(f"s_and_b32 {s(T+5)}, {s(T+2)}, 3")
    A(f"s_lshl_b32 {s(sRB128)}, {s(T+3)}, 2")
    A(f"s_add_u32 {s(sRB128)}, {s(sRB128)}, {s(T+5)}")
    A(f"s_lshr_b32 {s(T+6)}, {s(T+2)}, 2")
    A(f"s_lshl_b32 {s(sJ)}, {s(T+4)}, 3")
    A(f"s_add_u32 {s(sJ)}, {s(sJ)}, {s(T+6)}")
    A(f"s_mul_i32 {s(sROT1)}, {s(T+5)}, 3")
    A(f"s_add_u32 {s(sROT1)}, {s(sROT1)}, {s(T+6)}")
    A(f"s_cmp_ge_u32 {s(sROT1)}, 10")
    A(f"s_cselect_b32 {s(T+7)}, 10, 0")
    A(f"s_sub_u32 {s(sROT1)}, {s(sROT1)}, {s(T+7)}")
    A(f"s_and_b32 {s(T+5)}, {s(T+2)}, 7")
    A(f"s_lshl_b32 {s(sRB64)}, {s(T+3)}, 3")
    A(f"s_add_u32 {s(sRB64)}, {s(sRB64)}, {s(T+5)}")
    A(f"s_lshr_b32 {s(T+6)}, {s(T+2)}, 3")
    A(f"s_lshl_b32 {s(sCB)}, {s(T+4)}, 2")
    A(f"s_add_u32 {s(sCB)}, {s(sCB)}, {s(T+6)}")
    A(f"s_cmp_lt_u32 {s(sCB)}, 7")
    A(f"s_cselect_b32 {s(sHAS2)}, 1, 0")
    A(f"s_mul_i32 {s(sROT2)}, {s(T+5)}, 3")
    A(f"s_add_u32 {s(sROT2)}, {s(sROT2)}, {s(T+6)}")
    A(f"s_cmp_ge_u32 {s(sROT2)}, 24")
    A(f"s_cselect_b32 {s(T+7)}, 24, 0")
    A(f"s_sub_u32 {s(sROT2)}, {s(sROT2)}, {s(T+7)}")
    A(f"s_mul_i32 {s(sROT3)}, {s(T+6)}, 3")
    A(f"s_add_u32 {s(sROT3)}, {s(sROT3)}, {s(T+5)}")
    A(f"s_cmp_ge_u32 {s(sROT3)}, 10")
    A(f"s_cselect_b32 {s(T+7)}, 10, 0")
    A(f"s_sub_u32 {s(sROT3)}, {s(sROT3)}, {s(T+7)}")
    if NOROT:
        for r in (sROT1, sROT2, sROT3): A(f"s_mov_b32 {s(r)}, 0")
    A("s_waitcnt lgkmcnt(0)")
    A(f"s_cmp_ge_u32 {s(sW)}, 4")
    A(f"s_cbranch_scc0 {P}_comp")
    gen_loader(A, P)
    A.label(f"{P}_comp")
    make_srd(A, sXS, 44, WS_USED)
    make_srd(A, sOS, 4, S*D*2)
    A(f"s_lshl_b32 {s(sTILE)}, {s(sRB128)}, 2")
    A(f"s_add_u32 {s(sTILE)}, {s(sTILE)}, {s(sW)}")
    load_g1(A, sTILE)
    A(f"s_mul_i32 {s(T)}, {s(sJ)}, 192")
    load_bias(A, sB1, F*2, T)
    A(f"v_lshlrev_b32 {v(vL16)}, 4, v0")
    A(f"s_mul_i32 {s(sXOFF)}, {s(sTILE)}, 40960")
    A(f"s_add_u32 {s(sXOFF)}, {s(sXOFF)}, {XF}")
    kinit(A, sXOFF, 4096, sROT1, T+8)
    for f in range(8):
        xload(A, vX + 4*f, (f % 4)*1024)
        if f % 4 == 3: kstep(A, sXOFF, 4096, NS1, T+8)
    t0, t1, t2, t3 = vWF, vWF+1, vWF+2, vWF+3
    A(f"v_lshrrev_b32 {v(t0)}, 4, v0")
    A(f"v_and_b32 {v(t1)}, 15, v0")
    A(f"v_lshrrev_b32 {v(t2)}, 2, {v(t1)}")
    A(f"v_and_b32 {v(t1)}, 3, {v(t1)}")
    A(f"v_lshrrev_b32 {v(t3)}, 1, {v(t0)}")
    A(f"v_and_b32 {v(t0)}, 1, {v(t0)}")
    A(f"v_lshlrev_b32 {v(t0)}, 5, {v(t0)}")
    A(f"v_lshlrev_b32 {v(t1)}, 3, {v(t1)}")
    A(f"v_add_u32 {v(t0)}, {v(t0)}, {v(t1)}")
    A(f"v_lshl_add_u32 {v(vWN)}, {v(t3)}, 3, {v(t2)}")
    A(f"v_mul_u32_u24 {v(vWN)}, {RB}, {v(vWN)}")
    A(f"v_add_u32 {v(vWN)}, {v(vWN)}, {v(t0)}")
    A(f"v_lshl_add_u32 {v(vWP)}, {v(t3)}, 2, {v(t2)}")
    A(f"v_mul_u32_u24 {v(vWP)}, {RB}, {v(vWP)}")
    A(f"v_add_u32 {v(vWP)}, {v(vWP)}, {v(t0)}")
    A(f"v_mov_b32 {v(vWA)}, {v(vWN)}")
    A(f"s_mov_b32 {s(sSLOT)}, 0")
    A("s_waitcnt vmcnt(8)")
    unpack_bias(A)
    one_minus(A)
    wreads.perm = False
    A("s_barrier")
    if P1 is not None: A(f"s_setprio {P1}")
    wreads(A, 0, 0)
    def stage1(par, more_x, last, vm):
        for sx in range(4):
            buf = sx & 1
            A(f"s_waitcnt vmcnt({vm(sx)})")
            if sx < 3: wreads(A, sx+1, buf ^ 1); A("s_waitcnt lgkmcnt(6)")
            elif not last:
                advance(A); A("s_barrier"); wreads(A, 0, buf ^ 1); A("s_waitcnt lgkmcnt(6)")
            else: A("s_waitcnt lgkmcnt(0)")
            mfmas(A, vX + 4*(par*4+sx), buf)
            if more_x: xload(A, vX + 4*(par*4+sx), sx*1024)
        if more_x: kstep(A, sXOFF, 4096, NS1, T+8)
    lab = f"{P}_f1l"
    A(f"s_mov_b32 {s(sCNT)}, 4"); A.label(lab)
    stage1(0, True, False, lambda sx: 7); stage1(1, True, False, lambda sx: 7)
    A(f"s_sub_u32 {s(sCNT)}, {s(sCNT)}, 1"); A(f"s_cmp_lg_u32 {s(sCNT)}, 0"); A(f"s_cbranch_scc1 {lab}")
    stage1(0, False, False, lambda sx: 7 - sx); stage1(1, False, True, lambda sx: 3 - sx)
    if stamp: stamp.mid(A, 0)
    if PE is not None: A(f"s_setprio {PE}")
    sT2 = 84
    A(f"s_and_b32 {s(T)}, {s(sW)}, 1")
    A(f"s_lshr_b32 {s(sKH)}, {s(sW)}, 1")
    A(f"s_lshl_b32 {s(sT2)}, {s(sRB64)}, 1")
    A(f"s_add_u32 {s(sT2)}, {s(sT2)}, {s(T)}")
    BB = vX + 8
    make_srd(A, T+4, sB2, D*2)
    A(f"v_lshrrev_b32 {v(vT0)}, 5, v0")
    A(f"v_lshlrev_b32 {v(vT0)}, 3, {v(vT0)}")
    A(f"s_mul_i32 {s(T)}, {s(sCB)}, 192")
    for nb in range(3):
        for gg in range(4):
            A(f"buffer_load_dwordx2 {v(BB + (nb*4+gg)*2, 2)}, {v(vT0)}, {s(T+4,4)}, {s(T)} offen offset:{64*nb + 16*gg}")
    GB = vX + 32
    A(f"v_and_b32 {v(GB)}, 31, v0")
    A(f"s_lshl_b32 {s(T+10)}, {s(sT2)}, 5")
    A(f"v_add_u32 {v(GB)}, {s(T+10)}, {v(GB)}")
    A(f"v_lshlrev_b32 {v(GB)}, 2, {v(GB)}")
    A(f"v_add_u32 {v(GB)}, {GATE}, {v(GB)}")
    A(f"buffer_load_dword {v(GB)}, {v(GB)}, {s(sXS,4)}, 0 offen")
    A(f"s_mul_i32 {s(T)}, {s(sTILE)}, {96*1024}")
    A(f"s_mul_i32 {s(T+1)}, {s(sJ)}, {6*1024}")
    A(f"s_add_u32 {s(T)}, {s(T)}, {s(T+1)}")
    A(f"s_add_u32 {s(T)}, {s(T)}, {HF}")
    for nb in range(3):
        for m in range(2):
            a_ = vACC + nb*16 + 8*m
            d0 = vX + 4*((nb*2+m) & 1)
            for i in range(8): A(f"v_max_f32 {v(a_+i)}, 0, {v(a_+i)}")
            for i in range(8): A(f"v_mul_f32 {v(a_+i)}, {v(a_+i)}, {v(a_+i)}")
            for i in range(8): A(f"v_mul_f32 {v(a_+i)}, {v(a_+i)}, {v(vG)}")
            for i in range(4): A(f"v_cvt_pk_bf16_f32 {v(d0+i)}, {v(a_+2*i)}, {v(a_+2*i+1)}")
            st = 2*nb + m
            if st == 4: A(f"s_add_u32 {s(T)}, {s(T)}, 4096")
            A(f"buffer_store_dwordx4 {v(d0,4)}, {v(vL16)}, {s(sXS,4)}, {s(T)} offen offset:{(st%4)*1024} {XMOD}")
    A("s_waitcnt vmcnt(6)")
    A(f"v_mov_b32 {v(vG)}, {v(GB)}")
    one_minus(A)
    A(f"s_cmp_eq_u32 {s(sKH)}, 0")
    A(f"s_cselect_b32 {s(T+1)}, 1.0, 0")
    A(f"v_mul_f32 {v(vG)}, {s(T+1)}, {v(vG)}")
    for nb in range(3):
        for gg in range(4):
            a_ = vACC + nb*16 + 4*gg
            bsrc = BB + (nb*4+gg)*2
            A(f"v_lshlrev_b32 {v(a_)}, 16, {v(bsrc)}")
            A(f"v_and_b32 {v(a_+1)}, 0xffff0000, {v(bsrc)}")
            A(f"v_lshlrev_b32 {v(a_+2)}, 16, {v(bsrc+1)}")
            A(f"v_and_b32 {v(a_+3)}, 0xffff0000, {v(bsrc+1)}")
            for i in range(4): A(f"v_mul_f32 {v(a_+i)}, {v(a_+i)}, {v(vG)}")
    if stamp and TSTAMP: stamp.mid(A, 1)
    A("s_waitcnt vmcnt(0)")
    if stamp and TSTAMP: stamp.mid(A, 2)
    A(f"s_lshl_b32 {s(T)}, {s(sRB128)}, 6")
    A(f"s_lshl_b32 {s(T+1)}, {s(sJ)}, 2")
    A(f"s_add_u32 {s(T)}, {s(T)}, {s(T+1)}")
    A(f"s_add_u32 {s(T)}, {s(T)}, {s(sW)}")
    A(f"s_lshl_b32 {s(T)}, {s(T)}, 2")
    A(f"s_add_u32 {s(T)}, {s(T)}, {HFLAG}")
    signal(A, sXS, T, vX, vX+1)
    A(f"s_cmp_eq_u32 {s(sHAS2)}, 0")
    A(f"s_cbranch_scc1 {P}_end")
    A(f"s_mov_b32 {s(sTILE)}, {s(sT2)}")
    A(f"s_lshr_b32 {s(T)}, {s(sRB64)}, 1")
    A(f"s_lshl_b32 {s(T)}, {s(T)}, 8")
    A(f"s_add_u32 {s(T)}, {s(T)}, {HFLAG}")
    poll(A, T, f"{P}_h")
    A("s_barrier")
    if P2 is not None: A(f"s_setprio {P2}")
    A(f"s_mul_i32 {s(sXOFF)}, {s(sTILE)}, {96*1024}")
    A(f"s_lshl_b32 {s(T)}, {s(sKH)}, 11")
    A(f"s_add_u32 {s(sXOFF)}, {s(sXOFF)}, {s(T)}")
    A(f"s_add_u32 {s(sXOFF)}, {s(sXOFF)}, {HF}")
    kinit(A, sXOFF, 4096, sROT2, T+8)
    for st in range(6):
        for i in range(2): xload(A, vX + 4*(2*st+i), i*1024, XMOD)
        kstep(A, sXOFF, 4096, NS2, T+8)
    advance(A)
    A(f"s_mul_i32 {s(T)}, {s(sKH)}, {32*RB}")
    A(f"v_add_u32 {v(vWP)}, {s(T)}, {v(vWP)}")
    A(f"v_add_u32 {v(vWN)}, {s(T)}, {v(vWN)}")
    A(f"v_add_u32 {v(vWA)}, {s(sSLOT)}, {v(vWP)}")
    wreads.perm = True
    A("s_barrier")
    wreads(A, 0, 0)
    def stage2(xregs, xnext, last, vm, mod, next_setup=None):
        for i in range(2):
            A(f"s_waitcnt vmcnt({vm(i)})")
            if i == 0: wreads(A, 1, 1); A("s_waitcnt lgkmcnt(6)")
            elif not last:
                advance(A); A("s_barrier"); wreads(A, 0, 0); A("s_waitcnt lgkmcnt(6)")
            else: A("s_waitcnt lgkmcnt(0)")
            mfmas(A, xregs[i], i)
            if xnext is not None: xnext(i)
    lab = f"{P}_f2l"
    A(f"s_mov_b32 {s(sCNT)}, 3"); A.label(lab)
    for s6 in range(6):
        regs = [vX + 4*(2*s6), vX + 4*(2*s6+1)]
        stage2(regs, lambda i, regs=regs: xload(A, regs[i], i*1024, XMOD), False, lambda i: 11, "")
        kstep(A, sXOFF, 4096, NS2, T+8)
    A(f"s_sub_u32 {s(sCNT)}, {s(sCNT)}, 1"); A(f"s_cmp_lg_u32 {s(sCNT)}, 0"); A(f"s_cbranch_scc1 {lab}")
    for s6 in range(6):
        regs = [vX + 4*(2*s6), vX + 4*(2*s6+1)]
        stage2(regs, None, s6 == 5, lambda i, s6=s6: 11 - (2*s6 + i), "")
    if stamp and not TSTAMP: stamp.mid(A, 1)
    A(f"s_lshl_b32 {s(T)}, {s(sRB64)}, 8")
    A(f"s_add_u32 {s(T)}, {s(T)}, {OFLAG}")
    poll(A, T, f"{P}_o")
    A("s_barrier")
    if P3 is not None: A(f"s_setprio {P3}")
    if stamp and not TSTAMP: stamp.mid(A, 2)
    A(f"s_mul_i32 {s(sXOFF)}, {s(sTILE)}, 40960")
    A(f"s_lshl_b32 {s(T)}, {s(sKH)}, 11")
    A(f"s_add_u32 {s(sXOFF)}, {s(sXOFF)}, {s(T)}")
    A(f"s_add_u32 {s(sXOFF)}, {s(sXOFF)}, {OF}")
    kinit(A, sXOFF, 4096, sROT3, T+8)
    for st in range(6):
        for i in range(2): xload(A, vX + 4*(2*st+i), i*1024, XMOD)
        kstep(A, sXOFF, 4096, NS3, T+8)
    advance(A)
    A(f"v_add_u32 {v(vWA)}, {s(sSLOT)}, {v(vWN)}")
    wreads.perm = False
    A("s_barrier")
    wreads(A, 0, 0)
    for st in range(10):
        regs = [vX + 4*((2*st+i) % 12) for i in range(2)]
        def vm(i, st=st):
            f = 2*st + i
            issued = min(19, 11 + f)
            return issued - f
        def xn(i, st=st, regs=regs):
            f = 2*st + i + 12
            if f <= 19:
                xload(A, regs[i], i*1024, XMOD)
                if i == 1: kstep(A, sXOFF, 4096, NS3, T+8)
        stage2(regs, xn, st == 9, vm, "")
    A(f"s_and_b32 {s(T)}, {s(sW)}, 1")
    A(f"s_mul_i32 {s(T)}, {s(T)}, {SLOT}")
    A(f"s_add_u32 {s(T)}, {s(T)}, {2*SLOT}")
    A(f"v_add_u32 {v(vWA)}, {s(T)}, {v(vL16)}")
    A("s_nop 7"); A("s_nop 3")
    A(f"s_cmp_eq_u32 {s(sKH)}, 0")
    A(f"s_cbranch_scc1 {P}_r0")
    for i in range(12): A(f"ds_write_b128 {v(vWA)}, {v(vACC+4*i,4)} offset:{1024*i}")
    A("s_waitcnt lgkmcnt(0)")
    A("s_barrier")
    A(f"s_branch {P}_end")
    A.label(f"{P}_r0")
    A(f"v_and_b32 {v(vT0)}, 31, v0")
    A(f"s_lshl_b32 {s(T+1)}, {s(sTILE)}, 5")
    A(f"v_add_u32 {v(vT0)}, {s(T+1)}, {v(vT0)}")
    A(f"v_mul_u32_u24 {v(vT0)}, 1280, {v(vT0)}")
    A(f"v_lshrrev_b32 {v(vG)}, 5, v0")
    A(f"v_lshl_add_u32 {v(vT0)}, {v(vG)}, 4, {v(vT0)}")
    A(f"s_mul_i32 {s(T+1)}, {s(sCB)}, 192")
    A("s_barrier")
    for i in range(12): A(f"ds_read_b128 {v(vX+4*i,4)}, {v(vWA)} offset:{1024*i}")
    for j in range(3):
        if j == 2:
            A(f"s_cmp_eq_u32 {s(sCB)}, 6")
            A(f"s_cbranch_scc1 {P}_end2")
        for m in range(2):
            a = vACC + 16*j + 8*m
            x = vX + 16*j + 8*m
            A(f"s_waitcnt lgkmcnt({11 - (4*j + 2*m + 1)})")
            for i in range(8): A(f"v_add_f32 {v(a+i)}, {v(a+i)}, {v(x+i)}")
            d0 = vWF + 4*((2*j+m) % 4)
            for i in range(4): A(f"v_cvt_pk_bf16_f32 {v(d0+i)}, {v(a+2*i)}, {v(a+2*i+1)}")
            A("s_nop 1")
            A(f"v_permlane32_swap_b32 {v(d0)}, {v(d0+2)}")
            A(f"v_permlane32_swap_b32 {v(d0+1)}, {v(d0+3)}")
            A("s_nop 1")
            A(f"buffer_store_dwordx4 {v(d0,4)}, {v(vT0)}, {s(sOS,4)}, {s(T+1)} offen offset:{64*j+32*m}")
    A.label(f"{P}_end2")
    A.label(f"{P}_end")
    if stamp: stamp.end(A, sW, sXS, vWF)
    A("s_endpgm")
```

```python
from asmlib import *
from layout import *

def mfma(d, aa, bb, cc):
    return f"v_mfma_f32_32x32x16_bf16 {v(d,16)}, {v(aa,4)}, {v(bb,4)}, {cc}"

ABL = set()
TRACE = None
def trace_out(A, g):
    A("v_writelane_b32 v30, s58, 62")
    A("v_writelane_b32 v30, s60, 63")
    A(f"s_lshl_b32 s62, s2, 3")
    A(f"s_add_u32 s62, s62, {s(g.sWAVE)}")
    A(f"s_lshl_b32 s62, s62, 8")
    A(f"s_add_u32 s62, s62, {0x2800000 + TRACE*0x100000}")
    A("v_lshlrev_b32 v31, 2, v0")
    A(f"buffer_store_dword v30, v31, {s(g.sOSRD,4)}, s62 offen")
class G1:
    sXSRD, sWSRD, sOSRD = 8, 12, 16
    sWAVE, sXOFF, sWOFF, sLDS = 20, 21, 22, 23
    sT = 24
    def __init__(self, pfx, BN, BK, R, NS, ldx, ldw, WM, WN, kperm=False):
        self.pfx, self.BM, self.BN, self.BK, self.R, self.NS = pfx, 128, BN, BK, R, NS
        self.ldx, self.ldw = ldx, ldw
        self.WM, self.WN = WM, WN
        self.TM = 128 // 32 // WM
        self.TN = BN // 32 // WN
        self.KS = BK // 16
        self.XB = 128 * BK * 2
        self.WB = BK * BN * 2
        self.SLOT = self.XB + self.WB
        self.RB = BN * 2
        self.wswz = (self.RB % 256 == 0)
        self.kperm = kperm
        self.nx = self.XB // 1024 // 4
        wbytes = self.WB // 4
        self.nw_full = wbytes // 1024
        self.w_tail = (wbytes % 1024) // 16
        self.nw = self.nw_full + (1 if self.w_tail else 0)
        self.n = self.nx + self.nw
        assert self.nx <= 4 and self.nw <= 4
        r = 2
        self.vXA = r; r += self.KS
        self.nWA = self.TN if self.wswz else 1
        self.vWA = r; r += self.nWA
        self.hi = (self.R * self.SLOT > 65536)
        self.nhi = (self.R * self.SLOT + 65535) // 65536 - 1
        self.vHI = r; r += self.nhi * (self.KS + self.nWA)
        r = (r + 1) // 2 * 2
        self.vXF = r; r += 2 * self.TM * 4
        self.vWF = r; r += 2 * self.TN * 4
        self.vACC = r; r += self.TM * self.TN * 16
        self.vT = r
        self.vLX = 2
        self.vLW = 6

    def xaddr(self, off, s):
        h = off >> 16
        base = self.vXA + s if h == 0 else self.vHI + (h - 1) * (self.KS + self.nWA) + s
        return base, off & 0xffff
    def waddr(self, off, j):
        h = off >> 16
        jj = j if self.wswz else 0
        base = self.vWA + jj if h == 0 else self.vHI + (h - 1) * (self.KS + self.nWA) + self.KS + jj
        return base, off & 0xffff

    def loader(self, A, extra_end=None):
        p, T = self.pfx, self.sT
        rowb = self.BK * 2
        cpr = rowb // 16
        rpi = 64 // cpr
        A.c("---- loader wave")
        A(f"s_sub_u32 {s(T)}, {s(self.sWAVE)}, 4")
        t0, t1, t2, t3 = 10, 11, 12, 13
        A(f"v_lshrrev_b32 {v(t0)}, {cpr.bit_length()-1}, v0")
        A(f"v_and_b32 {v(t1)}, {cpr-1}, v0")
        for j in range(self.nx):
            A(f"s_mul_i32 {s(T+1)}, {s(T)}, {self.nx*rpi}")
            A(f"s_add_u32 {s(T+1)}, {s(T+1)}, {j*rpi}")
            A(f"v_add_u32 {v(t2)}, {s(T+1)}, {v(t0)}")
            if self.BK == 64:
                A(f"v_bfe_u32 {v(t3)}, {v(t2)}, 1, 3")
            else:
                A(f"v_bfe_u32 {v(t3)}, {v(t2)}, 2, 2")
            A(f"v_xor_b32 {v(t3)}, {v(t3)}, {v(t1)}")
            A(f"v_lshlrev_b32 {v(t3)}, 4, {v(t3)}")
            A(f"s_mov_b32 {s(T+2)}, {self.ldx}")
            A(f"v_mul_lo_u32 {v(t2)}, {v(t2)}, {s(T+2)}")
            A(f"v_add_u32 {v(self.vLX+j)}, {v(t2)}, {v(t3)}")
            if j: A(f"v_subrev_u32 {v(self.vLX+j)}, {1024*j}, {v(self.vLX+j)}")
        cw = self.RB // 16
        per = self.WB // 4 // 16
        for j in range(self.nw):
            A(f"s_mul_i32 {s(T+1)}, {s(T)}, {per}")
            A(f"s_add_u32 {s(T+1)}, {s(T+1)}, {j*64}")
            A(f"v_add_u32 {v(t2)}, {s(T+1)}, v0")
            if cw & (cw - 1) == 0:
                A(f"v_lshrrev_b32 {v(t3)}, {cw.bit_length()-1}, {v(t2)}")
                A(f"v_and_b32 {v(t2)}, {cw-1}, {v(t2)}")
            else:
                magic = (65536 + cw - 1) // cw
                A(f"v_mul_u32_u24 {v(t3)}, {magic}, {v(t2)}")
                A(f"v_lshrrev_b32 {v(t3)}, 16, {v(t3)}")
                A(f"v_mul_u32_u24 {v(t1+4)}, {cw}, {v(t3)}")
                A(f"v_sub_u32 {v(t2)}, {v(t2)}, {v(t1+4)}")
            if self.wswz:
                A(f"v_and_b32 {v(t1+4)}, 3, {v(t3)}")
                A(f"v_lshlrev_b32 {v(t1+4)}, 2, {v(t1+4)}")
                A(f"v_xor_b32 {v(t2)}, {v(t2)}, {v(t1+4)}")
            A(f"v_lshlrev_b32 {v(t2)}, 4, {v(t2)}")
            A(f"s_mov_b32 {s(T+2)}, {self.ldw}")
            A(f"v_mul_lo_u32 {v(t3)}, {v(t3)}, {s(T+2)}")
            A(f"v_add_u32 {v(self.vLW+j)}, {v(t2)}, {v(t3)}")
            if j: A(f"v_subrev_u32 {v(self.vLW+j)}, {1024*j}, {v(self.vLW+j)}")
        A(f"s_mul_i32 {s(T+3)}, {s(T)}, {self.nx*1024}")
        A(f"s_mul_i32 {s(T+4)}, {s(T)}, {self.WB//4}")
        A(f"s_add_u32 {s(T+4)}, {s(T+4)}, {self.XB}")
        if self.w_tail:
            lo = (1 << self.w_tail) - 1
            A(f"s_mov_b32 {s(T+6)}, {lo & 0xffffffff}")
            A(f"s_mov_b32 {s(T+7)}, {lo >> 32}")
        def issue(st):
            if 'nodma' in ABL: return
            slot = (st % self.R) * self.SLOT
            A(f"s_add_u32 m0, {s(T+3)}, {slot}")
            A("s_nop 0")
            for j in range(self.nx):
                A(f"buffer_load_dwordx4 {v(self.vLX+j)}, {s(self.sXSRD,4)}, {s(self.sXOFF)} offen offset:{1024*j} lds")
            A(f"s_add_u32 m0, {s(T+4)}, {slot}")
            A(f"s_add_u32 {s(self.sXOFF)}, {s(self.sXOFF)}, {self.BK*2}")
            for j in range(self.nw):
                if self.w_tail and j == self.nw - 1: A(f"s_mov_b64 exec, {s(T+6,2)}")
                A(f"buffer_load_dwordx4 {v(self.vLW+j)}, {s(self.sWSRD,4)}, {s(self.sWOFF)} offen offset:{1024*j} lds")
                if self.w_tail and j == self.nw - 1: A(f"s_mov_b64 exec, -1")
            A(f"s_add_u32 {s(self.sWOFF)}, {s(self.sWOFF)}, {self.BK*self.ldw}")
        if TRACE is not None: A("s_memtime s[58:59]")
        for st in range(min(self.R - 1, self.NS)): issue(st)
        for i in range(self.NS):
            issued = min(self.NS - 1, i + self.R - 2)
            need = min(i + 1, self.NS - 1)
            A(f"s_waitcnt vmcnt({self.n * (issued - need)})")
            if TRACE is not None and i < 20: A(f"s_memtime s[{62+0}:{63}]"); A("s_waitcnt lgkmcnt(0)"); A(f"v_writelane_b32 v30, s62, {2*i}")
            A("s_barrier")
            if TRACE is not None and i < 20: A(f"s_memtime s[{62+0}:{63}]"); A("s_waitcnt lgkmcnt(0)"); A(f"v_writelane_b32 v30, s62, {2*i+1}")
            if i + self.R - 1 <= self.NS - 1: issue(i + self.R - 1)
        if TRACE is not None: trace_out(A, self)
        if extra_end: extra_end(A)

    def compute_setup(self, A):
        T = self.sT
        rowb = self.BK * 2
        t0, t1, t2, t3, t4 = self.vT, self.vT+1, self.vT+2, self.vT+3, self.vT+4
        A(f"s_lshr_b32 {s(T)}, {s(self.sWAVE)}, {self.WN.bit_length()-1}")
        A(f"s_and_b32 {s(T+1)}, {s(self.sWAVE)}, {self.WN-1}")
        A(f"v_and_b32 {v(t0)}, 31, v0")
        A(f"v_lshrrev_b32 {v(t1)}, 5, v0")
        if self.BK == 64: A(f"v_bfe_u32 {v(t2)}, {v(t0)}, 1, 3")
        else: A(f"v_bfe_u32 {v(t2)}, {v(t0)}, 2, 2")
        A(f"v_xor_b32 {v(t2)}, {v(t2)}, {v(t1)}")
        A(f"v_lshlrev_b32 {v(t2)}, 4, {v(t2)}")
        A(f"s_mul_i32 {s(T+2)}, {s(T)}, {self.TM*32}")
        A(f"v_add_u32 {v(t0)}, {s(T+2)}, {v(t0)}")
        A(f"v_mul_u32_u24 {v(t0)}, {rowb}, {v(t0)}")
        A(f"v_add_u32 {v(t0)}, {v(t0)}, {v(t2)}")
        for sx in range(self.KS):
            A(f"v_xor_b32 {v(self.vXA+sx)}, {32*sx}, {v(t0)}")
        A(f"v_lshrrev_b32 {v(t0)}, 4, v0")
        A(f"v_and_b32 {v(t1)}, 15, v0")
        A(f"v_lshrrev_b32 {v(t2)}, 2, {v(t1)}")
        A(f"v_and_b32 {v(t1)}, 3, {v(t1)}")
        A(f"v_lshrrev_b32 {v(t3)}, 1, {v(t0)}")
        A(f"v_and_b32 {v(t0)}, 1, {v(t0)}")
        khs = 2 if self.kperm else 3
        A(f"v_lshlrev_b32 {v(t3)}, {khs}, {v(t3)}")
        A(f"v_add_u32 {v(t3)}, {v(t3)}, {v(t2)}")
        A(f"v_mul_u32_u24 {v(t3)}, {self.RB}, {v(t3)}")
        A(f"v_lshlrev_b32 {v(t0)}, 5, {v(t0)}")
        A(f"v_lshlrev_b32 {v(t1)}, 3, {v(t1)}")
        A(f"v_add3_u32 {v(t3)}, {v(t3)}, {v(t0)}, {v(t1)}")
        A(f"v_add_u32 {v(t3)}, {self.XB}, {v(t3)}")
        if self.wswz:
            A(f"v_lshlrev_b32 {v(t2)}, 6, {v(t2)}")
            A(f"v_add_u32 {v(t3)}, {v(t3)}, {v(t2)}")
            A(f"s_mul_i32 {s(T+2)}, {s(T+1)}, {self.TN*64}")
            for j in range(self.TN):
                A(f"s_add_u32 {s(T+3)}, {s(T+2)}, {64*j}")
                A(f"v_xor_b32 {v(self.vWA+j)}, {s(T+3)}, {v(t3)}")
        else:
            A(f"s_mul_i32 {s(T+2)}, {s(T+1)}, {self.TN*64}")
            A(f"v_add_u32 {v(self.vWA)}, {s(T+2)}, {v(t3)}")
        for h in range(self.nhi):
            for j in range(self.KS + self.nWA):
                A(f"v_add_u32 {v(self.vHI + h*(self.KS+self.nWA) + j)}, {65536*(h+1)}, {v(self.vXA + j)}")

    def reads(self, A, st, sx, buf):
        if 'noread' in ABL: return 0
        slot = (st % self.R) * self.SLOT
        rowb = self.BK * 2
        n = 0
        for tb in range(self.TM):
            b, imm = self.xaddr(slot + tb * 32 * rowb, sx)
            A(f"ds_read_b128 {v(self.vXF + (buf*self.TM + tb)*4, 4)}, {v(b)} offset:{imm}"); n += 1
        for j in range(self.TN):
            for hf in range(2):
                rowoff = sx * 16 + (8 if self.kperm else 4) * hf
                off = slot + rowoff * self.RB + (0 if self.wswz else 64 * j)
                b, imm = self.waddr(off, j)
                A(f"ds_read_b64_tr_b16 {v(self.vWF + (buf*self.TN + j)*4 + 2*hf, 2)}, {v(b)} offset:{imm}"); n += 1
        return n

    def compute(self, A, orient, acc_init=None):
        nreads = self.TM + 2 * self.TN
        first = [[True] * self.TN for _ in range(self.TM)]
        A("s_barrier")
        self.reads(A, 0, 0, 0)
        step = 0
        for st in range(self.NS):
            for sx in range(self.KS):
                buf = step & 1
                last = (st == self.NS - 1 and sx == self.KS - 1)
                if not last:
                    nst, nsx = (st, sx + 1) if sx + 1 < self.KS else (st + 1, 0)
                    self.reads(A, nst, nsx, buf ^ 1)
                    A(f"s_waitcnt lgkmcnt({nreads})")
                else:
                    A("s_waitcnt lgkmcnt(0)")
                for tb in range(self.TM if 'nomfma' not in ABL or step == 0 else 0):
                    js = range(self.TN) if tb % 2 == 0 else range(self.TN - 1, -1, -1)
                    for j in js:
                        acc = self.vACC + (tb * self.TN + j) * 16
                        xf = self.vXF + (buf * self.TM + tb) * 4
                        wf = self.vWF + (buf * self.TN + j) * 4
                        c = "0" if (step == 0 and acc_init is None) else v(acc, 16)
                        A(mfma(acc, wf, xf, c) if orient == 'T' else mfma(acc, xf, wf, c))
                if sx == self.KS - 1 and st < self.NS - 1:
                    A("s_barrier")
                step += 1

class G2:
    sXSRD, sWSRD, sOSRD = 8, 12, 16
    sWAVE, sXOFF, sWOFF, sLDS = 20, 21, 22, 23
    sT = 24
    def __init__(self, pfx, BN, BK, R, NS, ldw, kperm, mode, PD=4, vbase=2, lds_base=0):
        self.pfx, self.BN, self.BK, self.R, self.NS, self.ldw = pfx, BN, BK, R, NS, ldw
        self.kperm, self.mode, self.PD, self.lds_base = kperm, mode, PD, lds_base
        self.TN = BN // 32
        self.KS = BK // 16
        self.WB = BK * BN * 2
        self.SLOT = self.WB
        self.RB = BN * 2
        m = self.RB % 256
        self.swz = 'none' if m in (64, 192) else ('x4' if m == 0 else 'x2')
        wbytes = self.WB // 4
        self.nw_full = wbytes // 1024
        self.w_tail = (wbytes % 1024) // 16
        self.nw = self.nw_full + (1 if self.w_tail else 0)
        self.n = self.nw
        assert self.nw <= 4 or True
        r = vbase
        self.vL16 = r; r += 1
        self.nWA = self.TN if self.swz != 'none' else 1
        self.vWA = r; r += self.nWA
        self.nhi = (lds_base + self.R * self.SLOT + 65535) // 65536 - 1
        self.vHI = r; r += self.nhi * self.nWA
        r = (r + 1) // 2 * 2
        self.vXF = r; r += PD * 4
        self.nbuf = 1 if mode == 'roll' else 2
        self.vWF = r; r += self.nbuf * self.TN * 4
        self.vACC = r; r += self.TN * 16
        self.vT = r
        self.vLW = 2

    def waddr(self, off, j):
        h = off >> 16
        jj = j if self.swz != 'none' else 0
        base = self.vWA + jj if h == 0 else self.vHI + (h - 1) * self.nWA + jj
        return base, off & 0xffff

    def loader(self, A):
        T = self.sT
        A.c("---- W loader wave")
        A(f"s_sub_u32 {s(T)}, {s(self.sWAVE)}, 4")
        t2, t3, t4 = 20, 21, 22
        cw = self.RB // 16
        per = self.WB // 4 // 16
        for j in range(self.nw):
            A(f"s_mul_i32 {s(T+1)}, {s(T)}, {per}")
            A(f"s_add_u32 {s(T+1)}, {s(T+1)}, {j*64}")
            A(f"v_add_u32 {v(t2)}, {s(T+1)}, v0")
            if cw & (cw - 1) == 0:
                A(f"v_lshrrev_b32 {v(t3)}, {cw.bit_length()-1}, {v(t2)}")
                A(f"v_and_b32 {v(t2)}, {cw-1}, {v(t2)}")
            else:
                magic = (65536 + cw - 1) // cw
                A(f"v_mul_u32_u24 {v(t3)}, {magic}, {v(t2)}")
                A(f"v_lshrrev_b32 {v(t3)}, 16, {v(t3)}")
                A(f"v_mul_u32_u24 {v(t4)}, {cw}, {v(t3)}")
                A(f"v_sub_u32 {v(t2)}, {v(t2)}, {v(t4)}")
            if self.swz == 'x4':
                A(f"v_and_b32 {v(t4)}, 3, {v(t3)}")
                A(f"v_lshlrev_b32 {v(t4)}, 2, {v(t4)}")
                A(f"v_xor_b32 {v(t2)}, {v(t2)}, {v(t4)}")
            elif self.swz == 'x2':
                A(f"v_bfe_u32 {v(t4)}, {v(t3)}, 1, 1")
                A(f"v_lshlrev_b32 {v(t4)}, 2, {v(t4)}")
                A(f"v_xor_b32 {v(t2)}, {v(t2)}, {v(t4)}")
            A(f"v_lshlrev_b32 {v(t2)}, 4, {v(t2)}")
            A(f"s_mov_b32 {s(T+2)}, {self.ldw}")
            A(f"v_mul_lo_u32 {v(t3)}, {v(t3)}, {s(T+2)}")
            A(f"v_add_u32 {v(self.vLW+j)}, {v(t2)}, {v(t3)}")
            if j % 4: A(f"v_subrev_u32 {v(self.vLW+j)}, {1024*(j%4)}, {v(self.vLW+j)}")
        A(f"s_mul_i32 {s(T+4)}, {s(T)}, {self.WB//4}")
        if self.lds_base: A(f"s_add_u32 {s(T+4)}, {s(T+4)}, {self.lds_base}")
        if self.w_tail:
            lo = (1 << self.w_tail) - 1
            A(f"s_mov_b32 {s(T+6)}, {lo & 0xffffffff}")
            A(f"s_mov_b32 {s(T+7)}, {lo >> 32}")
        def issue(st):
            slot = (st % self.R) * self.SLOT
            for j in range(self.nw):
                if j % 4 == 0:
                    A(f"s_add_u32 m0, {s(T+4)}, {slot + 1024*j}")
                    A("s_nop 0")
                if self.w_tail and j == self.nw - 1: A(f"s_mov_b64 exec, {s(T+6,2)}")
                A(f"buffer_load_dwordx4 {v(self.vLW+j)}, {s(self.sWSRD,4)}, {s(self.sWOFF)} offen offset:{1024*(j%4)} lds")
                if self.w_tail and j == self.nw - 1: A(f"s_mov_b64 exec, -1")
            A(f"s_add_u32 {s(self.sWOFF)}, {s(self.sWOFF)}, {self.BK*self.ldw}")
        for st in range(min(self.R - 1, self.NS)): issue(st)
        for i in range(self.NS):
            issued = min(self.NS - 1, i + self.R - 2)
            need = min(i + 1, self.NS - 1)
            A(f"s_waitcnt vmcnt({self.n * (issued - need)})")
            A("s_barrier")
            if i + self.R - 1 <= self.NS - 1: issue(i + self.R - 1)

    def compute_setup(self, A):
        T = self.sT
        t0, t1, t2, t3 = self.vT, self.vT+1, self.vT+2, self.vT+3
        A(f"v_lshlrev_b32 {v(self.vL16)}, 4, v0")
        A(f"v_lshrrev_b32 {v(t0)}, 4, v0")
        A(f"v_and_b32 {v(t1)}, 15, v0")
        A(f"v_lshrrev_b32 {v(t2)}, 2, {v(t1)}")
        A(f"v_and_b32 {v(t1)}, 3, {v(t1)}")
        A(f"v_lshrrev_b32 {v(t3)}, 1, {v(t0)}")
        A(f"v_and_b32 {v(t0)}, 1, {v(t0)}")
        khs = 2 if self.kperm else 3
        A(f"v_lshlrev_b32 {v(t3)}, {khs}, {v(t3)}")
        A(f"v_add_u32 {v(t3)}, {v(t3)}, {v(t2)}")
        A(f"v_mul_u32_u24 {v(t3)}, {self.RB}, {v(t3)}")
        A(f"v_lshlrev_b32 {v(t0)}, 5, {v(t0)}")
        A(f"v_lshlrev_b32 {v(t1)}, 3, {v(t1)}")
        A(f"v_add3_u32 {v(t3)}, {v(t3)}, {v(t0)}, {v(t1)}")
        if self.lds_base: A(f"v_add_u32 {v(t3)}, {self.lds_base}, {v(t3)}")
        if self.swz == 'x4':
            A(f"v_lshlrev_b32 {v(t2)}, 6, {v(t2)}")
            A(f"v_add_u32 {v(t3)}, {v(t3)}, {v(t2)}")
            for j in range(self.TN): A(f"v_xor_b32 {v(self.vWA+j)}, {64*j}, {v(t3)}")
        elif self.swz == 'x2':
            A(f"v_bfe_u32 {v(t2)}, {v(t2)}, 1, 1")
            A(f"v_lshlrev_b32 {v(t2)}, 6, {v(t2)}")
            A(f"v_add_u32 {v(t3)}, {v(t3)}, {v(t2)}")
            for j in range(self.TN): A(f"v_xor_b32 {v(self.vWA+j)}, {64*j}, {v(t3)}")
        else:
            A(f"v_mov_b32 {v(self.vWA)}, {v(t3)}")
        for h in range(self.nhi):
            for j in range(self.nWA):
                A(f"v_add_u32 {v(self.vHI + h*self.nWA + j)}, {65536*(h+1)}, {v(self.vWA + j)}")

    def wread(self, A, step, j, buf):
        st, sx = divmod(step, self.KS)
        slot = (st % self.R) * self.SLOT
        for hf in range(2):
            rowoff = sx * 16 + (8 if self.kperm else 4) * hf
            off = slot + rowoff * self.RB + (0 if self.swz != 'none' else 64 * j)
            if self.lds_base and False: off += self.lds_base
            b, imm = self.waddr(off + (self.lds_base if False else 0), j)
            A(f"ds_read_b64_tr_b16 {v(self.vWF + (buf*self.TN + j)*4 + 2*hf, 2)}, {v(b)} offset:{imm}")

    def xload(self, A, step):
        r = self.vXF + (step % self.PD) * 4
        q, rem = divmod(step, 4)
        A(f"buffer_load_dwordx4 {v(r,4)}, {v(self.vL16)}, {s(self.sXSRD,4)}, {s(self.sXOFF)} offen offset:{rem*1024}")
        if rem == 3: A(f"s_add_u32 {s(self.sXOFF)}, {s(self.sXOFF)}, 4096")

    def prefetch_x(self, A):
        for st in range(min(self.PD, self.NS * self.KS)): self.xload(A, st)

    def compute(self, A, orient='T', xpre=True):
        NSTEP = self.NS * self.KS
        if not xpre: self.prefetch_x(A)
        A("s_barrier")
        for j in range(self.TN): self.wread(A, 0, j, 0)
        for step in range(NSTEP):
            st, sx = divmod(step, self.KS)
            last = step == NSTEP - 1
            rem_x = min(NSTEP - 1, step + self.PD - 1) - step
            A(f"s_waitcnt vmcnt({rem_x})")
            xf = self.vXF + (step % self.PD) * 4
            if self.mode == 'dbl':
                buf = step & 1
                if not last:
                    for j in range(self.TN): self.wread(A, step + 1, j, buf ^ 1)
                    A(f"s_waitcnt lgkmcnt({2*self.TN})")
                else:
                    A("s_waitcnt lgkmcnt(0)")
                for j in range(self.TN):
                    acc = self.vACC + j * 16; wf = self.vWF + (buf * self.TN + j) * 4
                    c = "0" if step == 0 else v(acc, 16)
                    A(mfma(acc, wf, xf, c) if orient == 'T' else mfma(acc, xf, wf, c))
            else:
                for j in range(self.TN):
                    if not last: A(f"s_waitcnt lgkmcnt({2*(self.TN-1)})")
                    else: A(f"s_waitcnt lgkmcnt({2*(self.TN-1-j)})")
                    acc = self.vACC + j * 16; wf = self.vWF + j * 4
                    c = "0" if step == 0 else v(acc, 16)
                    A(mfma(acc, wf, xf, c) if orient == 'T' else mfma(acc, xf, wf, c))
                    if not last: self.wread(A, step + 1, j, 0)
            if step + self.PD < NSTEP: self.xload(A, step + self.PD)
            if sx == self.KS - 1 and st < self.NS - 1:
                if self.mode == 'roll': pass
                A("s_barrier")
```

```python
from asmlib import *
from layout import *

def mfma(d, aa, bb, cc):
    return f"v_mfma_f32_32x32x16_bf16 {v(d,16)}, {v(aa,4)}, {v(bb,4)}, {cc}"

TRACE = None
LPRIO = 3
PROBE = False
FIRSTWAIT = False
UID = [0]
def uid():
    UID[0] += 1
    return UID[0]

def runs(seq):
    out = []
    for e in seq:
        if out and out[-1][0] == e: out[-1][1] += 1
        else: out.append([e, 1])
    return out

class Base:
    sXSRD, sWSRD, sOSRD = 8, 12, 16
    sWAVE, sXOFF, sWOFF, sLDS = 20, 21, 22, 23
    sT = 24
    sSLOT, sCNT, sDLT = 36, 37, 38
    sTRSRD = 16
    npre = 3
    sROT, sKI = 39, 34
    sKI2, sXCUR, sWCUR = 56, 54, 55
    def wrap(self, A, sreg, total):
        A(f"s_add_u32 {s(sreg)}, {s(sreg)}, {self.SLOT}")
        A(f"s_cmp_ge_u32 {s(sreg)}, {total}")
        A(f"s_cselect_b32 {s(sreg)}, 0, {s(sreg)}")
    def loader_loop(self, A, issue, npre=3):
        R, NS, n = self.R, self.NS, self.n
        npre = min(npre, R, NS)
        if TRACE is not None:
            A("s_memtime s[58:59]"); A("s_mov_b32 s57, 0")
        for st in range(npre): issue()
        seq = []
        issued = npre - 1
        for i in range(NS):
            wait = n * (issued - i)
            do = (issued + 1 <= min(NS - 1, i - 2 + R))
            seq.append((wait, do))
            if do: issued += 1
        for (wait, do), cnt in runs(seq):
            lab = f"{self.pfx}_ll{uid()}"
            if cnt > 1:
                A(f"s_mov_b32 {s(self.sCNT)}, {cnt}")
                A.label(lab)
            A(f"s_waitcnt vmcnt({wait})")
            if TRACE is not None:
                A("s_memtime s[62:63]"); A("s_waitcnt lgkmcnt(0)"); A("s_mov_b32 m0, s57"); A("v_writelane_b32 v50, s62, m0"); A("s_add_u32 s57, s57, 1")
            A("s_barrier")
            if TRACE is not None:
                A("s_memtime s[62:63]"); A("s_waitcnt lgkmcnt(0)"); A("s_mov_b32 m0, s57"); A("v_writelane_b32 v50, s62, m0"); A("s_add_u32 s57, s57, 1")
            if do: issue()
            if cnt > 1:
                A(f"s_sub_u32 {s(self.sCNT)}, {s(self.sCNT)}, 1")
                A(f"s_cmp_lg_u32 {s(self.sCNT)}, 0")
                A(f"s_cbranch_scc1 {lab}")
        if TRACE is not None:
            A("v_writelane_b32 v50, s58, 62")
            A("v_writelane_b32 v50, s60, 63")
            A(f"s_lshl_b32 s62, s2, 3")
            A(f"s_add_u32 s62, s62, {s(self.sWAVE)}")
            A(f"s_lshl_b32 s62, s62, 8")
            A(f"s_add_u32 s62, s62, {0x2800000 + TRACE*0x100000}")
            A("v_lshlrev_b32 v51, 2, v0")
            A(f"buffer_store_dword v50, v51, {s(self.sTRSRD,4)}, s62 offen")
    def owner_loop(self, A, issue):
        R, NS, n, T = self.R, self.NS, self.n, self.sT
        sI, sTT = T+10, T+11
        sW = T
        p = self.pfx
        u = uid()
        def set_stage(sreg_or_const):
            A(f"s_add_u32 {s(self.sKI2)}, {s(sTT)}, {s(self.sROT)}")
            A(f"s_cmp_ge_u32 {s(self.sKI2)}, {NS}")
            A(f"s_cselect_b32 {s(T+8)}, {NS}, 0")
            A(f"s_sub_u32 {s(self.sKI2)}, {s(self.sKI2)}, {s(T+8)}")
            A(f"s_mul_i32 {s(T+8)}, {s(sTT)}, {(65536 + R - 1)//R}")
            A(f"s_lshr_b32 {s(T+8)}, {s(T+8)}, 16")
            A(f"s_mul_i32 {s(T+8)}, {s(T+8)}, {R}")
            A(f"s_sub_u32 {s(T+8)}, {s(sTT)}, {s(T+8)}")
            A(f"s_mul_i32 {s(self.sSLOT)}, {s(T+8)}, {self.SLOT}")
        if TRACE is not None:
            A("s_memtime s[58:59]"); A("s_mov_b32 s57, 0")
        npre = min(R, NS)
        if 2 * n > 63: npre = min(npre, 4)
        A(f"s_mov_b32 {s(sTT)}, {s(sW)}")
        set_stage(None); issue()
        if npre > 4:
            A(f"s_cmp_ge_u32 {s(sW)}, {npre - 4}")
            A(f"s_cbranch_scc1 {p}_np{u}")
            A(f"s_add_u32 {s(sTT)}, {s(sW)}, 4")
            set_stage(None); issue()
            A.label(f"{p}_np{u}")
        A(f"s_mov_b32 {s(sI)}, 0")
        A.label(f"{p}_ol{u}")
        A(f"s_and_b32 {s(T+8)}, {s(sI)}, 3")
        A(f"s_cmp_lg_u32 {s(T+8)}, {s(sW)}")
        A(f"s_cbranch_scc1 {p}_nw{u}")
        if npre > 4:
            A(f"s_cmp_ge_u32 {s(sI)}, {npre - 4}")
            A(f"s_cbranch_scc1 {p}_w0{u}")
            A(f"s_waitcnt vmcnt({min(n,63)})")
            A(f"s_branch {p}_nw{u}")
            A.label(f"{p}_w0{u}")
        A("s_waitcnt vmcnt(0)")
        A.label(f"{p}_nw{u}")
        if TRACE is not None:
            A("s_memtime s[62:63]"); A("s_waitcnt lgkmcnt(0)"); A("s_mov_b32 m0, s57"); A("v_writelane_b32 v30, s62, m0"); A("s_add_u32 s57, s57, 1")
        A("s_barrier")
        if TRACE is not None:
            A("s_memtime s[62:63]"); A("s_waitcnt lgkmcnt(0)"); A("s_mov_b32 m0, s57"); A("v_writelane_b32 v30, s62, m0"); A("s_add_u32 s57, s57, 1")
        A(f"s_add_u32 {s(sTT)}, {s(sI)}, {R - 2}")
        A(f"s_cmp_lt_u32 {s(sTT)}, {npre}")
        A(f"s_cbranch_scc1 {p}_ni{u}")
        A(f"s_cmp_ge_u32 {s(sTT)}, {NS}")
        A(f"s_cbranch_scc1 {p}_ni{u}")
        A(f"s_and_b32 {s(T+8)}, {s(sTT)}, 3")
        A(f"s_cmp_lg_u32 {s(T+8)}, {s(sW)}")
        A(f"s_cbranch_scc1 {p}_ni{u}")
        set_stage(None); issue()
        A.label(f"{p}_ni{u}")
        A(f"s_add_u32 {s(sI)}, {s(sI)}, 1")
        A(f"s_cmp_lt_u32 {s(sI)}, {NS}")
        A(f"s_cbranch_scc1 {p}_ol{u}")
        if TRACE is not None:
            A("v_writelane_b32 v30, s58, 62")
            A("v_writelane_b32 v30, s60, 63")
            A(f"s_lshl_b32 s62, s2, 3")
            A(f"s_add_u32 s62, s62, {s(self.sWAVE)}")
            A(f"s_lshl_b32 s62, s62, 8")
            A(f"s_add_u32 s62, s62, {0x2800000 + TRACE*0x100000}")
            A("v_lshlrev_b32 v31, 2, v0")
            A(f"buffer_store_dword v30, v31, {s(self.sTRSRD,4)}, s62 offen")
    def w_owner_setup(self, A, vbase):
        cw = self.RB // 16
        nwi = self.WB // 1024
        assert self.WB % 1024 == 0
        t2, t3, t4, t5 = 60, 61, 62, 63
        import math
        per = cw // math.gcd(cw, 64)
        rows_per = per * 64 // cw
        if self.swz != 'none': assert rows_per % 4 == 0 or per == 1 and rows_per % 4 == 0 or True
        for j in range(min(per, nwi)):
            if j: A(f"v_add_u32 {v(t2)}, {j*64}, v0")
            else: A(f"v_mov_b32 {v(t2)}, v0")
            self.chunk_addr(A, t2, t3, t5, t4, cw)
            if self.swz == 'x4':
                A(f"v_and_b32 {v(t4)}, 3, {v(t3)}")
                A(f"v_lshlrev_b32 {v(t4)}, 2, {v(t4)}")
                A(f"v_xor_b32 {v(t5)}, {v(t5)}, {v(t4)}")
            elif self.swz == 'x2':
                A(f"v_bfe_u32 {v(t4)}, {v(t3)}, 1, 1")
                A(f"v_lshlrev_b32 {v(t4)}, 2, {v(t4)}")
                A(f"v_xor_b32 {v(t5)}, {v(t5)}, {v(t4)}")
            A(f"v_lshlrev_b32 {v(t5)}, 4, {v(t5)}")
            A(f"v_mul_u32_u24 {v(t3)}, {self.ldw}, {v(t3)}")
            A(f"v_add_u32 {v(t5)}, {v(t5)}, {v(t3)}")
            for jj in range(j, nwi, per):
                c = (jj // per) * rows_per * self.ldw - 1024 * (jj % 4)
                assert c >= 0 or jj % 4 == 0 or True
                A(f"v_add_u32 {v(vbase+jj)}, {c & 0xffffffff}, {v(t5)}")
        assert rows_per % 4 == 0, rows_per
    def w_owner_issue(self, A, vbase, wlds):
        nwi = self.WB // 1024
        for j in range(nwi):
            if j % 4 == 0:
                A(f"s_add_u32 m0, {s(self.sSLOT)}, {wlds + 1024*j}")
                A("s_nop 0")
            A(f"buffer_load_dwordx4 {v(vbase+j)}, {s(self.sWSRD,4)}, {s(self.sWCUR)} offen offset:{1024*(j%4)} lds")
    def rot_init(self, A, pairs):
        A(f"s_mov_b32 {s(self.sKI)}, {s(self.sROT)}")
        for (r, step) in pairs:
            A(f"s_mul_i32 {s(self.sT+8)}, {s(self.sROT)}, {step}")
            A(f"s_add_u32 {s(r)}, {s(r)}, {s(self.sT+8)}")
    def rot_step(self, A, pairs):
        A(f"s_add_u32 {s(self.sKI)}, {s(self.sKI)}, 1")
        A(f"s_cmp_eq_u32 {s(self.sKI)}, {self.NS}")
        A(f"s_cselect_b32 {s(self.sKI)}, 0, {s(self.sKI)}")
        for i, (r, step) in enumerate(pairs):
            A(f"s_cselect_b32 {s(self.sT+8+i)}, {step*self.NS}, 0")
        for i, (r, step) in enumerate(pairs):
            A(f"s_add_u32 {s(r)}, {s(r)}, {step}")
            A(f"s_sub_u32 {s(r)}, {s(r)}, {s(self.sT+8+i)}")
    def chunk_addr(self, A, q, row, p, t, cw):
        if cw & (cw - 1) == 0:
            A(f"v_lshrrev_b32 {v(row)}, {cw.bit_length()-1}, {v(q)}")
            A(f"v_and_b32 {v(p)}, {cw-1}, {v(q)}")
        else:
            magic = (65536 + cw - 1) // cw
            A(f"v_mul_u32_u24 {v(row)}, {magic}, {v(q)}")
            A(f"v_lshrrev_b32 {v(row)}, 16, {v(row)}")
            A(f"v_mul_u32_u24 {v(t)}, {cw}, {v(row)}")
            A(f"v_sub_u32 {v(p)}, {v(q)}, {v(t)}")
    def w_loader_setup(self, A, vbase):
        T = self.sT
        cw = self.RB // 16
        per = self.WB // 4 // 16
        t2, t3, t4, t5 = 24, 25, 26, 27
        for j in range(self.nw):
            A(f"s_mul_i32 {s(T+1)}, {s(T)}, {per}")
            if j: A(f"s_add_u32 {s(T+1)}, {s(T+1)}, {j*64}")
            A(f"v_add_u32 {v(t2)}, {s(T+1)}, v0")
            self.chunk_addr(A, t2, t3, t5, t4, cw)
            if self.swz == 'x4':
                A(f"v_and_b32 {v(t4)}, 3, {v(t3)}")
                A(f"v_lshlrev_b32 {v(t4)}, 2, {v(t4)}")
                A(f"v_xor_b32 {v(t5)}, {v(t5)}, {v(t4)}")
            elif self.swz == 'x2':
                A(f"v_bfe_u32 {v(t4)}, {v(t3)}, 1, 1")
                A(f"v_lshlrev_b32 {v(t4)}, 2, {v(t4)}")
                A(f"v_xor_b32 {v(t5)}, {v(t5)}, {v(t4)}")
            A(f"v_lshlrev_b32 {v(t5)}, 4, {v(t5)}")
            A(f"v_mul_u32_u24 {v(t3)}, {self.ldw}, {v(t3)}")
            A(f"v_add_u32 {v(vbase+j)}, {v(t5)}, {v(t3)}")
            if j % 4: A(f"v_subrev_u32 {v(vbase+j)}, {1024*(j%4)}, {v(vbase+j)}")
        if self.w_tail:
            lo = (1 << self.w_tail) - 1
            A(f"s_mov_b32 {s(T+6)}, {lo & 0xffffffff}")
            A(f"s_mov_b32 {s(T+7)}, {lo >> 32}")
    def w_issue(self, A, vbase, sLW):
        T = self.sT
        for j in range(self.nw):
            if j % 4 == 0:
                A(f"s_add_u32 m0, {s(sLW)}, {s(self.sSLOT)}")
                if j: A(f"s_add_u32 m0, m0, {1024*j}")
                A("s_nop 0")
            if self.w_tail and j == self.nw - 1: A(f"s_mov_b64 exec, {s(T+6,2)}")
            A(f"buffer_load_dwordx4 {v(vbase+j)}, {s(self.sWSRD,4)}, {s(self.sWOFF)} offen offset:{1024*(j%4)} lds")
            if self.w_tail and j == self.nw - 1: A(f"s_mov_b64 exec, -1")
    def w_read_setup(self, A, wbase, sWN):
        t0, t1, t2, t3 = self.vT, self.vT+1, self.vT+2, self.vT+3
        A(f"v_lshrrev_b32 {v(t0)}, 4, v0")
        A(f"v_and_b32 {v(t1)}, 15, v0")
        A(f"v_lshrrev_b32 {v(t2)}, 2, {v(t1)}")
        A(f"v_and_b32 {v(t1)}, 3, {v(t1)}")
        A(f"v_lshrrev_b32 {v(t3)}, 1, {v(t0)}")
        A(f"v_and_b32 {v(t0)}, 1, {v(t0)}")
        khs = 2 if self.kperm else 3
        A(f"v_lshlrev_b32 {v(t3)}, {khs}, {v(t3)}")
        A(f"v_add_u32 {v(t3)}, {v(t3)}, {v(t2)}")
        A(f"v_mul_u32_u24 {v(t3)}, {self.RB}, {v(t3)}")
        A(f"v_lshlrev_b32 {v(t0)}, 5, {v(t0)}")
        A(f"v_lshlrev_b32 {v(t1)}, 3, {v(t1)}")
        A(f"v_add3_u32 {v(t3)}, {v(t3)}, {v(t0)}, {v(t1)}")
        if wbase: A(f"v_add_u32 {v(t3)}, {wbase}, {v(t3)}")
        if self.swz != 'none':
            if self.swz == 'x2': A(f"v_bfe_u32 {v(t2)}, {v(t2)}, 1, 1")
            A(f"v_lshlrev_b32 {v(t2)}, 6, {v(t2)}")
            A(f"v_add_u32 {v(t3)}, {v(t3)}, {v(t2)}")
            for j in range(self.nWA):
                if sWN is not None:
                    A(f"s_add_u32 {s(self.sT+3)}, {s(sWN)}, {64*j}")
                    A(f"v_xor_b32 {v(self.vWA+j)}, {s(self.sT+3)}, {v(t3)}")
                else:
                    A(f"v_xor_b32 {v(self.vWA+j)}, {64*j}, {v(t3)}")
        else:
            if sWN is not None: A(f"v_add_u32 {v(self.vWA)}, {s(sWN)}, {v(t3)}")
            else: A(f"v_mov_b32 {v(self.vWA)}, {v(t3)}")
    def wfrag_read(self, A, sx, j, dst):
        for hf in range(2):
            rowoff = sx * 16 + (8 if self.kperm else 4) * hf
            off = rowoff * self.RB + (0 if self.swz != 'none' else 64 * j)
            b = self.vWA + (j if self.swz != 'none' else 0)
            A(f"ds_read_b64_tr_b16 {v(dst + 2*hf, 2)}, {v(b)} offset:{off}")
    def advance_slot(self, A, regs):
        tot = self.R * self.SLOT
        A(f"s_add_u32 {s(self.sSLOT)}, {s(self.sSLOT)}, {self.SLOT}")
        A(f"s_cmp_ge_u32 {s(self.sSLOT)}, {tot}")
        A(f"s_cselect_b32 {s(self.sDLT)}, {tot}, 0")
        A(f"s_sub_u32 {s(self.sSLOT)}, {s(self.sSLOT)}, {s(self.sDLT)}")
        A(f"s_sub_u32 {s(self.sDLT)}, {self.SLOT}, {s(self.sDLT)}")
        for r in regs: A(f"v_add_u32 {v(r)}, {s(self.sDLT)}, {v(r)}")

def swz_kind(RB):
    m = RB % 256
    return 'none' if m in (64, 192) else ('x4' if m == 0 else 'x2')

class G1(Base):
    def __init__(self, pfx, BN, BK, R, NS, ldx, ldw, WM, WN, kperm=False, lds_base=0):
        self.pfx, self.BM, self.BN, self.BK, self.R, self.NS = pfx, 128, BN, BK, R, NS
        self.ldx, self.ldw, self.WM, self.WN, self.kperm, self.lds_base = ldx, ldw, WM, WN, kperm, lds_base
        self.TM = 128 // 32 // WM
        self.TN = BN // 32 // WN
        self.KS = BK // 16
        self.XB = 128 * BK * 2
        self.WB = BK * BN * 2
        self.SLOT = self.XB + self.WB
        self.RB = BN * 2
        self.swz = swz_kind(self.RB)
        self.nx = self.XB // 1024 // 4
        wbytes = self.WB // 4
        self.w_tail = (wbytes % 1024) // 16
        self.nw = wbytes // 1024 + (1 if self.w_tail else 0)
        self.n = self.nx + self.nw
        r = 2
        self.vXA = r; r += self.KS
        self.nWA = self.TN if self.swz != 'none' else 1
        self.vWA = r; r += self.nWA
        r = (r + 1) // 2 * 2
        self.vXF = r; r += 2 * self.TM * 4
        self.vWF = r; r += 2 * self.TN * 4
        self.vACC = r; r += self.TM * self.TN * 16
        self.vT = r
        self.vLX, self.vLW = 2, 8

    def loader(self, A):
        T = self.sT
        rowb = self.BK * 2
        cpr = rowb // 16
        rpi = 64 // cpr
        A.c("---- loader wave")
        if LPRIO: A(f"s_setprio {LPRIO}")
        A(f"s_sub_u32 {s(T)}, {s(self.sWAVE)}, 4")
        t0, t1, t2, t3 = 20, 21, 22, 23
        A(f"v_lshrrev_b32 {v(t0)}, {cpr.bit_length()-1}, v0")
        A(f"v_and_b32 {v(t1)}, {cpr-1}, v0")
        A(f"s_mul_i32 {s(T+1)}, {s(T)}, {self.nx*rpi}")
        for j in range(self.nx):
            A(f"v_add_u32 {v(t2)}, {s(T+1)}, {v(t0)}")
            if j: A(f"v_add_u32 {v(t2)}, {j*rpi}, {v(t2)}")
            if self.BK == 64: A(f"v_bfe_u32 {v(t3)}, {v(t2)}, 1, 3")
            else: A(f"v_bfe_u32 {v(t3)}, {v(t2)}, 2, 2")
            A(f"v_xor_b32 {v(t3)}, {v(t3)}, {v(t1)}")
            A(f"v_lshlrev_b32 {v(t3)}, 4, {v(t3)}")
            A(f"v_mul_u32_u24 {v(t2)}, {self.ldx}, {v(t2)}")
            A(f"v_add_u32 {v(self.vLX+j)}, {v(t2)}, {v(t3)}")
            if j: A(f"v_subrev_u32 {v(self.vLX+j)}, {1024*j}, {v(self.vLX+j)}")
        self.w_loader_setup(A, self.vLW)
        sLX, sLW = T+3, T+4
        A(f"s_mul_i32 {s(sLX)}, {s(T)}, {self.nx*1024}")
        A(f"s_mul_i32 {s(sLW)}, {s(T)}, {self.WB//4}")
        A(f"s_add_u32 {s(sLW)}, {s(sLW)}, {self.XB + self.lds_base}")
        if self.lds_base: A(f"s_add_u32 {s(sLX)}, {s(sLX)}, {self.lds_base}")
        A(f"s_mov_b32 {s(self.sSLOT)}, 0")
        pairs = [(self.sXOFF, self.BK*2), (self.sWOFF, self.BK*self.ldw)]
        self.rot_init(A, pairs)
        def issue():
            A(f"s_add_u32 m0, {s(sLX)}, {s(self.sSLOT)}")
            A("s_nop 0")
            for j in range(self.nx):
                A(f"buffer_load_dwordx4 {v(self.vLX+j)}, {s(self.sXSRD,4)}, {s(self.sXOFF)} offen offset:{1024*j} lds")
            self.w_issue(A, self.vLW, sLW)
            self.rot_step(A, pairs)
            self.wrap(A, self.sSLOT, self.R * self.SLOT)
        self.loader_loop(A, issue, self.npre)

    def compute_setup(self, A):
        T = self.sT
        rowb = self.BK * 2
        t0, t1, t2 = self.vT, self.vT+1, self.vT+2
        A(f"s_lshr_b32 {s(T)}, {s(self.sWAVE)}, {self.WN.bit_length()-1}")
        A(f"s_and_b32 {s(T+1)}, {s(self.sWAVE)}, {self.WN-1}")
        A(f"v_and_b32 {v(t0)}, 31, v0")
        A(f"v_lshrrev_b32 {v(t1)}, 5, v0")
        if self.BK == 64: A(f"v_bfe_u32 {v(t2)}, {v(t0)}, 1, 3")
        else: A(f"v_bfe_u32 {v(t2)}, {v(t0)}, 2, 2")
        A(f"v_xor_b32 {v(t2)}, {v(t2)}, {v(t1)}")
        A(f"v_lshlrev_b32 {v(t2)}, 4, {v(t2)}")
        A(f"s_mul_i32 {s(T+2)}, {s(T)}, {self.TM*32}")
        A(f"v_add_u32 {v(t0)}, {s(T+2)}, {v(t0)}")
        A(f"v_mul_u32_u24 {v(t0)}, {rowb}, {v(t0)}")
        A(f"v_add_u32 {v(t0)}, {v(t0)}, {v(t2)}")
        if self.lds_base: A(f"v_add_u32 {v(t0)}, {self.lds_base}, {v(t0)}")
        for sx in range(self.KS):
            A(f"v_xor_b32 {v(self.vXA+sx)}, {32*sx}, {v(t0)}")
        A(f"s_mul_i32 {s(T+2)}, {s(T+1)}, {self.TN*64}")
        self.w_read_setup(A, self.XB + self.lds_base, T+2)
        A(f"s_mov_b32 {s(self.sSLOT)}, 0")

    def reads(self, A, sx, buf):
        rowb = self.BK * 2
        for tb in range(self.TM):
            A(f"ds_read_b128 {v(self.vXF + (buf*self.TM + tb)*4, 4)}, {v(self.vXA+sx)} offset:{tb*32*rowb}")
        for j in range(self.TN):
            self.wfrag_read(A, sx, j, self.vWF + (buf*self.TN + j)*4)

    def mfmas(self, A, buf, orient):
        for tb in range(self.TM):
            js = range(self.TN) if tb % 2 == 0 else range(self.TN - 1, -1, -1)
            for j in js:
                acc = self.vACC + (tb * self.TN + j) * 16
                xf = self.vXF + (buf * self.TM + tb) * 4
                wf = self.vWF + (buf * self.TN + j) * 4
                A(mfma(acc, wf, xf, v(acc,16)) if orient == 'T' else mfma(acc, xf, wf, v(acc,16)))

    def compute(self, A, orient, zero_acc=True):
        nreads = self.TM + 2 * self.TN
        addr_regs = list(range(self.vXA, self.vXA + self.KS + self.nWA))
        if zero_acc:
            for i in range(self.TM * self.TN * 16): A(f"v_mov_b32 {v(self.vACC+i)}, 0")
        A("s_barrier")
        self.reads(A, 0, 0)
        lab = f"{self.pfx}_cl{uid()}"
        A(f"s_mov_b32 {s(self.sCNT)}, {self.NS - 1}")
        A.label(lab)
        for sx in range(self.KS):
            buf = sx & 1
            if sx + 1 < self.KS:
                self.reads(A, sx + 1, buf ^ 1)
            else:
                self.advance_slot(A, addr_regs)
                A("s_barrier")
                self.reads(A, 0, buf ^ 1)
            A(f"s_waitcnt lgkmcnt({nreads})")
            self.mfmas(A, buf, orient)
        A(f"s_sub_u32 {s(self.sCNT)}, {s(self.sCNT)}, 1")
        A(f"s_cmp_lg_u32 {s(self.sCNT)}, 0")
        A(f"s_cbranch_scc1 {lab}")
        for sx in range(self.KS):
            buf = sx & 1
            if sx + 1 < self.KS:
                self.reads(A, sx + 1, buf ^ 1)
                A(f"s_waitcnt lgkmcnt({nreads})")
            else:
                A("s_waitcnt lgkmcnt(0)")
            self.mfmas(A, buf, orient)

class G2(Base):
    def __init__(self, pfx, BN, BK, R, NS, ldw, kperm, mode, PD=4, lds_base=0, xmod=""):
        self.pfx, self.BN, self.BK, self.R, self.NS, self.ldw = pfx, BN, BK, R, NS, ldw
        self.kperm, self.mode, self.PD, self.lds_base, self.xmod = kperm, mode, PD, lds_base, xmod
        self.TN = BN // 32
        self.KS = BK // 16
        assert self.KS == 4 and PD == 4, "loop form assumes 4 steps per stage and PD == 4"
        self.WB = BK * BN * 2
        self.SLOT = self.WB
        self.RB = BN * 2
        self.swz = swz_kind(self.RB)
        wbytes = self.WB // 4
        self.w_tail = (wbytes % 1024) // 16
        self.nw = wbytes // 1024 + (1 if self.w_tail else 0)
        self.n = self.nw
        r = 2
        self.vL16 = r; r += 1
        self.nWA = self.TN if self.swz != 'none' else 1
        self.vWA = r; r += self.nWA
        r = (r + 1) // 2 * 2
        self.vXF = r; r += PD * 4
        self.nbuf = 1 if mode == 'roll' else 2
        self.vWF = r; r += self.nbuf * self.TN * 4
        self.vACC = r; r += self.TN * 16
        self.vT = r
        self.vLW = 2

    def loader(self, A):
        T = self.sT
        A.c("---- W loader wave")
        if LPRIO: A(f"s_setprio {LPRIO}")
        A(f"s_sub_u32 {s(T)}, {s(self.sWAVE)}, 4")
        self.w_loader_setup(A, self.vLW)
        sLW = T+4
        A(f"s_mul_i32 {s(sLW)}, {s(T)}, {self.WB//4}")
        if self.lds_base: A(f"s_add_u32 {s(sLW)}, {s(sLW)}, {self.lds_base}")
        A(f"s_mov_b32 {s(self.sSLOT)}, 0")
        pairs = [(self.sWOFF, self.BK*self.ldw)]
        self.rot_init(A, pairs)
        def issue():
            self.w_issue(A, self.vLW, sLW)
            self.rot_step(A, pairs)
            self.wrap(A, self.sSLOT, self.R * self.SLOT)
        self.loader_loop(A, issue, self.npre)

    def compute_setup(self, A):
        A(f"v_lshlrev_b32 {v(self.vL16)}, 4, v0")
        self.w_read_setup(A, self.lds_base, None)
        A(f"s_mov_b32 {s(self.sSLOT)}, 0")

    def xload(self, A, k):
        A(f"buffer_load_dwordx4 {v(self.vXF + k*4, 4)}, {v(self.vL16)}, {s(self.sXSRD,4)}, {s(self.sXOFF)} offen offset:{k*1024} {self.xmod}")

    def prefetch_x(self, A):
        self.rot_init(A, [(self.sXOFF, 4096)])
        for k in range(4): self.xload(A, k)
        self.rot_step(A, [(self.sXOFF, 4096)])

    def stage(self, A, last):
        TN = self.TN
        addr_regs = list(range(self.vWA, self.vWA + self.nWA))
        for sx in range(4):
            A(f"s_waitcnt vmcnt({3 if not last else 3 - sx})")
            xf = self.vXF + sx * 4
            nxt_stage = (sx == 3)
            final = last and sx == 3
            if nxt_stage and not last:
                self.advance_slot(A, addr_regs)
                A("s_barrier")
            nsx = (sx + 1) & 3
            if self.mode == 'dbl':
                buf = sx & 1
                if not final:
                    for j in range(TN): self.wfrag_read(A, nsx, j, self.vWF + ((buf ^ 1) * TN + j) * 4)
                    A(f"s_waitcnt lgkmcnt({2*TN})")
                else:
                    A("s_waitcnt lgkmcnt(0)")
                for j in range(TN):
                    acc = self.vACC + j * 16
                    A(mfma(acc, self.vWF + (buf * TN + j) * 4, xf, v(acc,16)))
            else:
                for j in range(TN):
                    A(f"s_waitcnt lgkmcnt({2*(TN-1) if not final else 2*(TN-1-j)})")
                    acc = self.vACC + j * 16
                    A(mfma(acc, self.vWF + j * 4, xf, v(acc,16)))
                    if not final: self.wfrag_read(A, nsx, j, self.vWF + j * 4)
            if not last: self.xload(A, sx)
        if not last: self.rot_step(A, [(self.sXOFF, 4096)])

    def compute(self, A, zero_acc=True):
        if zero_acc:
            for i in range(self.TN * 16): A(f"v_mov_b32 {v(self.vACC+i)}, 0")
        A("s_barrier")
        for j in range(self.TN): self.wfrag_read(A, 0, j, self.vWF + j * 4)
        lab = f"{self.pfx}_cl{uid()}"
        A(f"s_mov_b32 {s(self.sCNT)}, {self.NS - 1}")
        A.label(lab)
        self.stage(A, False)
        A(f"s_sub_u32 {s(self.sCNT)}, {s(self.sCNT)}, 1")
        A(f"s_cmp_lg_u32 {s(self.sCNT)}, 0")
        A(f"s_cbranch_scc1 {lab}")
        self.stage(A, True)
```

```python
from asmlib import *
from layout import *
from gemm2 import G1, mfma
import struct
NOROT = False
def f32bits(x): return struct.unpack("<I", struct.pack("<f", x))[0]

def make_srd(A, sreg, ptr_s, size):
    A(f"s_mov_b32 {s(sreg)}, {s(ptr_s)}")
    A(f"s_and_b32 {s(sreg+1)}, {s(ptr_s+1)}, 0xffff")
    A(f"s_mov_b32 {s(sreg+2)}, {size}")
    A(f"s_mov_b32 {s(sreg+3)}, 0x20000")

def gen_gate_xf(A, g, sRB):
    T = g.sT
    W = g.sWAVE
    A.c("---- gate + XF")
    A(f"s_cmp_ge_u32 {s(W)}, 3")
    A("s_cbranch_scc1 k1_gx_nz")
    A(f"s_lshl_b32 {s(T)}, {s(sRB)}, 8")
    A(f"s_add_u32 {s(T)}, {s(T)}, {HFLAG}")
    A(f"s_lshl_b32 {s(T+1)}, {s(sRB)}, 9")
    A(f"s_add_u32 {s(T+1)}, {s(T+1)}, {OFLAG - 256}")
    A(f"s_lshl_b32 {s(T+2)}, {s(W)}, 8")
    A(f"s_add_u32 {s(T+1)}, {s(T+1)}, {s(T+2)}")
    A(f"s_cmp_eq_u32 {s(W)}, 0")
    A(f"s_cselect_b32 {s(T)}, {s(T)}, {s(T+1)}")
    A("v_lshlrev_b32 v2, 2, v0")
    A("v_mov_b32 v3, 0")
    A(f"buffer_store_dword v3, v2, {s(g.sOSRD,4)}, {s(T)} offen")
    A.label("k1_gx_nz")
    A(f"s_load_dwordx2 {s(T+8,2)}, s[0:1], {KARG['gate_w']}")
    A("v_lshrrev_b32 v2, 3, v0")
    A("v_and_b32 v3, 7, v0")
    for pt in range(2):
        A(f"v_add_u32 v4, {pt*8}, v2")
        A("v_bfe_u32 v4, v4, 1, 3")
        A("v_xor_b32 v4, v4, v3")
        A("v_lshlrev_b32 v4, 4, v4")
        A("v_mul_u32_u24 v5, 1280, v2")
        A(f"v_add_u32 v{6+pt}, v4, v5")
    A(f"s_mul_i32 {s(T)}, {s(sRB)}, {128*1280}")
    A(f"s_mul_i32 {s(T+1)}, {s(W)}, 20")
    A(f"s_mov_b32 {s(T+2)}, 20")
    A.label("k1_gx_l")
    A(f"s_lshr_b32 {s(T+3)}, {s(T+1)}, 4")
    A(f"s_and_b32 {s(T+4)}, {s(T+1)}, 15")
    A(f"s_lshl_b32 m0, {s(T+1)}, 10")
    A(f"s_lshl_b32 {s(T+3)}, {s(T+3)}, 7")
    A(f"s_mul_i32 {s(T+5)}, {s(T+4)}, {8*1280}")
    A(f"s_add_u32 {s(T+3)}, {s(T+3)}, {s(T+5)}")
    A(f"s_add_u32 {s(T+3)}, {s(T+3)}, {s(T)}")
    A(f"s_bitcmp1_b32 {s(T+4)}, 0")
    A("s_cbranch_scc1 k1_gx_odd")
    A(f"buffer_load_dwordx4 v6, {s(g.sXSRD,4)}, {s(T+3)} offen lds")
    A("s_branch k1_gx_n")
    A.label("k1_gx_odd")
    A(f"buffer_load_dwordx4 v7, {s(g.sXSRD,4)}, {s(T+3)} offen lds")
    A.label("k1_gx_n")
    A(f"s_add_u32 {s(T+1)}, {s(T+1)}, 1")
    A(f"s_sub_u32 {s(T+2)}, {s(T+2)}, 1")
    A(f"s_cmp_lg_u32 {s(T+2)}, 0")
    A("s_cbranch_scc1 k1_gx_l")
    A("s_waitcnt lgkmcnt(0)")
    make_srd(A, T+12, T+8, 1280)
    A(f"s_lshr_b32 {s(T+1)}, {s(W)}, 2")
    A(f"s_and_b32 {s(T+2)}, {s(W)}, 3")
    A("v_lshrrev_b32 v8, 5, v0")
    A("v_lshlrev_b32 v9, 4, v8")
    A(f"s_mul_i32 {s(T+3)}, {s(T+1)}, 640")
    for i in range(20):
        A(f"buffer_load_dwordx4 v[{16+4*i}:{19+4*i}], v9, {s(T+12,4)}, {s(T+3)} offen offset:{32*i}")
    A("v_and_b32 v10, 31, v0")
    A("v_bfe_u32 v11, v10, 1, 3")
    A("v_xor_b32 v11, v11, v8")
    A("v_lshlrev_b32 v11, 4, v11")
    A(f"s_lshl_b32 {s(T+4)}, {s(T+2)}, 5")
    A(f"v_add_u32 v10, {s(T+4)}, v10")
    A("v_lshlrev_b32 v12, 7, v10")
    A("v_add_u32 v12, v12, v11")
    A(f"s_mul_i32 {s(T+4)}, {s(T+1)}, {5*16384}")
    A(f"v_add_u32 v12, {s(T+4)}, v12")
    for sx in range(4): A(f"v_xor_b32 v{100+sx}, {32*sx}, v12")
    A(f"s_lshl_b32 {s(T+4)}, {s(sRB)}, 2")
    A(f"s_add_u32 {s(T+4)}, {s(T+4)}, {s(T+2)}")
    A(f"s_mul_i32 {s(T+4)}, {s(T+4)}, 40960")
    A(f"s_mul_i32 {s(T+5)}, {s(T+1)}, {20*1024}")
    A(f"s_add_u32 {s(T+4)}, {s(T+4)}, {s(T+5)}")
    A(f"s_add_u32 {s(T+4)}, {s(T+4)}, {XF}")
    A("v_lshlrev_b32 v13, 4, v0")
    A("v_mov_b32 v14, 0")
    A("v_mov_b32 v15, 0")
    A("s_waitcnt vmcnt(0)")
    A("s_barrier")
    for i in range(20):
        st, sx = divmod(i, 4)
        d = 104 + 4*(i % 4)
        off = st*16384
        base = 100 + sx
        if off >= 65536:
            if sx == 0 or True:
                pass
        A(f"ds_read_b128 v[{d}:{d+3}], v{base} offset:{off % 65536}") if off < 65536 else (A(f"v_add_u32 v5, 0x10000, v{base}"), A(f"ds_read_b128 v[{d}:{d+3}], v5 offset:{off - 65536}"))
        A("s_waitcnt lgkmcnt(0)")
        if i and i % 4 == 0: A(f"s_add_u32 {s(T+4)}, {s(T+4)}, 4096")
        A(f"buffer_store_dwordx4 v[{d}:{d+3}], v13, {s(g.sOSRD,4)}, {s(T+4)} offen offset:{(i%4)*1024}")
        for j in range(4):
            A(f"v_dot2_f32_bf16 v{14+(j&1)}, v{d+j}, v{16+4*i+j}, v{14+(j&1)}")
    A("s_nop 3")
    A("v_add_f32 v14, v14, v15")
    A("v_mov_b32 v15, v14")
    A("s_nop 1")
    A("v_permlane32_swap_b32 v14, v15")
    A("s_nop 1")
    A("v_add_f32 v14, v14, v15")
    A("s_barrier")
    A(f"s_lshl_b32 {s(T+5)}, {s(W)}, 8")
    A("v_lshlrev_b32 v5, 2, v0")
    A(f"v_add_u32 v4, {s(T+5)}, v5")
    A("ds_write_b32 v4, v14")
    A("s_waitcnt lgkmcnt(0)")
    A("s_barrier")
    A(f"s_cmp_ge_u32 {s(W)}, 4")
    A("s_cbranch_scc1 k1_gx_end")
    A("ds_read_b32 v15, v4 offset:1024")
    A("s_waitcnt lgkmcnt(0)")
    A("v_add_f32 v6, v14, v15")
    A("v_cvt_pk_bf16_f32 v6, v6, v6")
    A("v_lshlrev_b32 v6, 16, v6")
    A(f"v_mul_f32 v6, 0xbfb8aa3b, v6")
    A("v_exp_f32 v6, v6")
    A("s_nop 0")
    A("v_add_f32 v6, 1.0, v6")
    A("v_rcp_f32 v6, v6")
    A("s_nop 0")
    A("v_cvt_pk_bf16_f32 v6, v6, v6")
    A("v_lshlrev_b32 v6, 16, v6")
    A(f"s_lshl_b32 {s(T+4)}, {s(sRB)}, 7")
    A(f"v_add_u32 v10, {s(T+4)}, v10")
    A("v_lshlrev_b32 v10, 2, v10")
    A(f"v_add_u32 v10, {GATE}, v10")
    A("s_mov_b32 exec_hi, 0")
    A(f"buffer_store_dword v6, v10, {s(g.sOSRD,4)}, 0 offen")
    A.label("k1_gx_end")
    A("s_endpgm")

def gen_k1(A, stamp=None, P="k1"):
    g = G1(P, BN=128, BK=64, R=5, NS=10, ldx=1280, ldw=3840, WM=2, WN=2)
    T = g.sT
    sCT, sRB, sWM, sWN = 40, 41, 42, 43
    A("s_cmp_ge_u32 s2, 256")
    A(f"s_cbranch_scc1 {P}_exit")
    if stamp: stamp.start(A)
    A(f"s_load_dwordx2 s[4:5], s[0:1], {KARG['A_x']}")
    A(f"s_load_dwordx2 s[6:7], s[0:1], {KARG['A_wqkv']}")
    A(f"s_load_dwordx2 s[44:45], s[0:1], {KARG['ws']}")
    A("v_lshrrev_b32 v1, 6, v0")
    A("v_and_b32 v0, 63, v0")
    A(f"v_readfirstlane_b32 {s(g.sWAVE)}, v1")
    A(f"s_and_b32 {s(T)}, s2, 7")
    A(f"s_lshr_b32 {s(T+1)}, s2, 3")
    A(f"s_and_b32 {s(T+2)}, {s(T)}, 3")
    A(f"s_lshl_b32 {s(T+2)}, {s(T+2)}, 2")
    A(f"s_and_b32 {s(T+3)}, {s(T+1)}, 3")
    A(f"s_add_u32 {s(sRB)}, {s(T+2)}, {s(T+3)}")
    A(f"s_lshr_b32 {s(T+2)}, {s(T)}, 2")
    A(f"s_lshl_b32 {s(T+2)}, {s(T+2)}, 3")
    A(f"s_lshr_b32 {s(T+3)}, {s(T+1)}, 2")
    A(f"s_add_u32 {s(sCT)}, {s(T+2)}, {s(T+3)}")
    A("s_waitcnt lgkmcnt(0)")
    make_srd(A, g.sXSRD, 4, S*D*2)
    make_srd(A, g.sWSRD, 6, D*3*D*2)
    make_srd(A, g.sOSRD, 44, WS_USED)
    A(f"s_mul_i32 {s(T)}, {s(sRB)}, 3")
    A(f"s_add_u32 {s(T)}, {s(T)}, {s(sCT)}")
    A(f"s_mul_i32 {s(T+1)}, {s(T)}, 6554")
    A(f"s_lshr_b32 {s(T+1)}, {s(T+1)}, 16")
    A(f"s_mul_i32 {s(T+1)}, {s(T+1)}, 10")
    A(f"s_sub_u32 {s(g.sROT)}, {s(T)}, {s(T+1)}")
    if NOROT: A(f"s_mov_b32 {s(g.sROT)}, 0")
    A(f"s_cmp_eq_u32 {s(sCT)}, 15")
    A(f"s_cbranch_scc1 {P}_gate")
    A(f"s_mul_i32 {s(g.sXOFF)}, {s(sRB)}, {128*1280}")
    A(f"s_lshl_b32 {s(g.sWOFF)}, {s(sCT)}, 8")
    A(f"s_cmp_ge_u32 {s(g.sWAVE)}, 4")
    A(f"s_cbranch_scc1 {P}_loader")
    g.compute_setup(A)
    A(f"s_lshr_b32 {s(sWM)}, {s(g.sWAVE)}, 1")
    A(f"s_and_b32 {s(sWN)}, {s(g.sWAVE)}, 1")
    A(f"s_cmp_ge_u32 {s(sCT)}, 10")
    A(f"s_cbranch_scc1 {P}_v")
    g.compute(A, 'T')
    if stamp: stamp.mid(A, 0)
    t = g.vT
    A(f"s_cmp_ge_u32 {s(sCT)}, 5")
    A(f"s_cselect_b32 {s(T)}, 5, 0")
    A(f"s_cselect_b32 {s(T+1)}, {KF-QF}, 0")
    A(f"s_cselect_b32 {s(T+6)}, 1.0, {f32bits(CSCALE)}")
    A(f"s_sub_u32 {s(T)}, {s(sCT)}, {s(T)}")
    A(f"s_lshl_b32 {s(T)}, {s(T)}, 5")
    A(f"s_lshl_b32 {s(T+2)}, {s(sWN)}, 4")
    A(f"s_add_u32 {s(T)}, {s(T)}, {s(T+2)}")
    A(f"s_lshl_b32 {s(T+2)}, {s(sRB)}, 2")
    A(f"s_lshl_b32 {s(T+3)}, {s(sWM)}, 1")
    A(f"s_add_u32 {s(T+2)}, {s(T+2)}, {s(T+3)}")
    A(f"s_mul_i32 {s(T+2)}, {s(T+2)}, 1280")
    A(f"s_add_u32 {s(T+1)}, {s(T+1)}, {s(T+2)}")
    if QF: A(f"s_add_u32 {s(T+1)}, {s(T+1)}, {QF}")
    A(f"v_and_b32 {v(t)}, 31, v0")
    A(f"v_lshrrev_b32 {v(t+1)}, 5, v0")
    A(f"v_lshlrev_b32 {v(t+2)}, 4, {v(t)}")
    A(f"v_lshlrev_b32 {v(t+3)}, 3, {v(t)}")
    A(f"v_add_u32 {v(t+3)}, 1024, {v(t+3)}")
    A(f"v_add_u32 {v(t+1)}, {s(T)}, {v(t+1)}")
    A("s_nop 7")
    for j in range(2):
        for gg in range(4):
            a0 = t + 4
            A(f"v_add_u32 {v(a0)}, {j*8+2*gg}, {v(t+1)}")
            A(f"v_mul_u32_u24 {v(a0+1)}, 52429, {v(a0)}")
            A(f"v_lshrrev_b32 {v(a0+1)}, 18, {v(a0+1)}")
            A(f"v_mul_u32_u24 {v(a0+2)}, 5, {v(a0+1)}")
            A(f"v_sub_u32 {v(a0)}, {v(a0)}, {v(a0+2)}")
            A(f"v_lshrrev_b32 {v(a0+2)}, 1, {v(a0)}")
            A(f"v_lshlrev_b32 {v(a0+2)}, 9, {v(a0+2)}")
            A(f"v_and_b32 {v(a0+3)}, 1, {v(a0)}")
            A(f"v_lshl_add_u32 {v(a0+2)}, {v(a0+3)}, 3, {v(a0+2)}")
            A(f"v_add_u32 {v(a0+2)}, {v(a0+2)}, {v(t+2)}")
            A(f"v_cmp_eq_u32 vcc, 4, {v(a0)}")
            A(f"v_mul_u32_u24 {v(a0+1)}, {HEADB}, {v(a0+1)}")
            A("s_nop 0")
            A(f"v_cndmask_b32 {v(a0+2)}, {v(a0+2)}, {v(t+3)}, vcc")
            A(f"v_add_u32 {v(a0+2)}, {v(a0+2)}, {v(a0+1)}")
            for tb in range(2):
                acc = g.vACC + (tb*2 + j)*16 + 4*gg
                d0 = t + 8 + 2*tb
                for i in range(4): A(f"v_mul_f32 {v(acc+i)}, {s(T+6)}, {v(acc+i)}")
                A(f"v_cvt_pk_bf16_f32 {v(d0)}, {v(acc)}, {v(acc+1)}")
                A(f"v_cvt_pk_bf16_f32 {v(d0+1)}, {v(acc+2)}, {v(acc+3)}")
                A(f"buffer_store_dwordx2 {v(d0,2)}, {v(a0+2)}, {s(g.sOSRD,4)}, {s(T+1)} offen offset:{1280*tb}")
            A("s_nop 0")
    if stamp: stamp.end(A, g.sWAVE, g.sOSRD, t+16)
    A("s_endpgm")
    A.label(f"{P}_v")
    g.compute(A, 'N')
    if stamp: stamp.mid(A, 0)
    A(f"s_sub_u32 {s(T)}, {s(sCT)}, 10")
    A(f"s_lshl_b32 {s(T)}, {s(T)}, 7")
    A(f"s_lshl_b32 {s(T+2)}, {s(sWN)}, 6")
    A(f"s_add_u32 {s(T)}, {s(T)}, {s(T+2)}")
    A(f"s_lshl_b32 {s(T+2)}, {s(sRB)}, 2")
    A(f"s_lshl_b32 {s(T+3)}, {s(sWM)}, 1")
    A(f"s_add_u32 {s(T+2)}, {s(T+2)}, {s(T+3)}")
    A(f"s_mul_i32 {s(T+2)}, {s(T+2)}, 1280")
    A(f"s_add_u32 {s(T+1)}, {s(T+2)}, {VF}")
    A(f"v_and_b32 {v(t)}, 31, v0")
    A(f"v_lshrrev_b32 {v(t+1)}, 5, v0")
    A(f"v_mul_u32_u24 {v(t+1)}, 320, {v(t+1)}")
    A(f"v_add_u32 {v(t)}, {s(T)}, {v(t)}")
    A("s_nop 7")
    for j in range(2):
        a0 = t + 4
        A(f"v_add_u32 {v(a0)}, {32*j}, {v(t)}")
        A(f"v_mul_u32_u24 {v(a0+1)}, 52429, {v(a0)}")
        A(f"v_lshrrev_b32 {v(a0+1)}, 20, {v(a0+1)}")
        A(f"v_mul_u32_u24 {v(a0+2)}, 20, {v(a0+1)}")
        A(f"v_sub_u32 {v(a0)}, {v(a0)}, {v(a0+2)}")
        A(f"v_mul_u32_u24 {v(a0+1)}, {HEADB}, {v(a0+1)}")
        A(f"v_lshl_add_u32 {v(a0+2)}, {v(a0)}, 4, {v(a0+1)}")
        A(f"v_add_u32 {v(a0+2)}, {v(a0+2)}, {v(t+1)}")
        for tb in range(2):
            for m in range(2):
                acc = g.vACC + (tb*2 + j)*16 + 8*m
                d0 = t + 8 + 4*((tb*2+m) & 1)
                for i in range(4): A(f"v_cvt_pk_bf16_f32 {v(d0+i)}, {v(acc+2*i)}, {v(acc+2*i+1)}")
                A(f"buffer_store_dwordx4 {v(d0,4)}, {v(a0+2)}, {s(g.sOSRD,4)}, {s(T+1)} offen offset:{1280*tb+640*m}")
                A("s_nop 1")
    if stamp: stamp.end(A, g.sWAVE, g.sOSRD, t+16)
    A("s_endpgm")
    A.label(f"{P}_loader")
    g.loader(A)
    A("s_endpgm")
    A.label(f"{P}_gate")
    gen_gate_xf(A, g, sRB)
    A.label(f"{P}_exit")
    A("s_endpgm")
    return g
```

```python
S, D, H, DH, F = 2048, 640, 32, 20, 1536
HEADB = 64 * 1280
QF = 0x000000
KF = 0x280000
VF = 0x500000
OF = 0x780000
HF = 0xA00000
GATE = 0x1000000
BP = 0x1010000
XF = 0x1B00000
WS_USED = 0x3000000
KARG = dict(A_x=0, A_wqkv=8, A_wo=16, B_x=24, B_w1=32, B_b1=40, B_w2=48, B_b2=56, gate_w=64, out=72, dbg=80, ws=88)
CSCALE = (20 ** -0.5) * 1.4426950408889634

HFLAG = 0x1E00000
OFLAG = 0x1E10000
```
